```python
import torch

def _softmax(x, axis=-1):
    return torch.softmax(x, dim=axis)

def _gelu(x):
    return torch.nn.functional.gelu(x, approximate='tanh')

def _silu(x):
    return torch.nn.functional.silu(x)

def _sigmoid(x):
    return torch.sigmoid(x)

def _layernorm(x, axis=-1, eps=1e-05):
    m = x.mean(dim=axis, keepdim=True)
    v = x.var(dim=axis, keepdim=True, unbiased=False)
    return (x - m) / torch.sqrt(v + eps)

def _scatter_add(tgt, idx, src, axis=0):
    return tgt.clone().index_add_(axis, idx, src)

def _segment_sum(src, seg, n):
    out = torch.zeros((n,) + src.shape[1:], dtype=src.dtype)
    return out.index_add_(0, seg, src)

def _pad(x, pw):
    flat = tuple((v for pair in reversed(pw) for v in pair))
    return torch.nn.functional.pad(x, flat)
kernel_name = 'adaLN_cond__sliding_block_cached__glu_gated_bilinear__decode'

def setup_inputs():

    _w = lambda a: (lambda t: t.to(torch.bfloat16) if t.is_floating_point() else t)(torch.as_tensor(a))

    def _A_setup():
        B, Sq, D = (1, 1, 512)
        Hq, Hkv, Sk, Dh = (32, 8, 32768, 128)
        assert Hq % Hkv == 0, (Hq, Hkv)
        return {'x': _w((lambda *s: torch.randn(*s, dtype=torch.bfloat16) * 0.05)(B, Sq, D)), 'k_cache': _w((lambda *s: torch.randn(*s, dtype=torch.bfloat16) * 0.8)(B, Hkv, Sk, Dh)), 'v_cache': _w((lambda *s: torch.randn(*s, dtype=torch.bfloat16) * 3.2)(B, Hkv, Sk, Dh)), 'wq': _w((lambda *s: torch.randn(*s, dtype=torch.bfloat16) * 0.8)(D, Hq * Dh) * D ** (-0.5)), 'wo': _w((lambda *s: torch.randn(*s, dtype=torch.bfloat16) * 3.2)(Hq * Dh, D) * (Hq * Dh) ** (-0.5))}
    _A_in = _A_setup()

    def _B_setup():
        B, S, D, F = (1, 1, 512, 1792)
        return {'x': _w((lambda *s: torch.randn(*s, dtype=torch.bfloat16) * 0.05)(B, S, D)), 'w_gate': _w((lambda *s: torch.randn(*s, dtype=torch.bfloat16) * 3.2)(D, F) * D ** (-0.5)), 'w_up': _w((lambda *s: torch.randn(*s, dtype=torch.bfloat16) * 3.2)(D, F) * D ** (-0.5)), 'w_down': _w((lambda *s: torch.randn(*s, dtype=torch.bfloat16) * 3.2)(F, D) * F ** (-0.5))}
    _B_in = _B_setup()
    return {'A_x': _A_in['x'], 'A_k_cache': _A_in['k_cache'], 'A_v_cache': _A_in['v_cache'], 'A_wq': _A_in['wq'], 'A_wo': _A_in['wo'], 'B_x': _B_in['x'], 'B_w_gate': _B_in['w_gate'], 'B_w_up': _B_in['w_up'], 'B_w_down': _B_in['w_down'], 'c': _w((lambda *s: torch.randn(*s, dtype=torch.bfloat16) * 0.4)(1, 512) * 8.0), 'w_mod': _w((lambda *s: torch.randn(*s, dtype=torch.bfloat16) * 0.4)(512, 6 * 512) * 512 ** (-0.5) * 8.0)}

def reference(A_x, A_k_cache, A_v_cache, A_wq, A_wo, B_x, B_w_gate, B_w_up, B_w_down, c, w_mod):

    def _A_ref(x, k_cache, v_cache, wq, wo):
        B, Sq, D = x.shape
        Hq, Dh = (32, 128)
        Hkv, Sk = (k_cache.shape[1], k_cache.shape[2])
        W = min(4096, max(256, Sk // 4))
        rep = Hq // Hkv
        q = (lambda x, *d: x.permute(*d))((x @ wq).reshape(B, Sq, Hq, Dh), 0, 2, 1, 3)
        k = (lambda x, n, axis: torch.repeat_interleave(x, n, dim=axis))(k_cache[:, :, Sk - W:, :], rep, axis=1)
        v = (lambda x, n, axis: torch.repeat_interleave(x, n, dim=axis))(v_cache[:, :, Sk - W:, :], rep, axis=1)
        scores = torch.einsum('bhqd,bhkd->bhqk', q, k) * Dh ** (-0.5)
        p = _softmax(scores, axis=-1)
        o = torch.einsum('bhqk,bhkd->bhqd', p, v)
        return (lambda x, *d: x.permute(*d))(o, 0, 2, 1, 3).reshape(B, Sq, Hq * Dh) @ wo

    def _B_ref(x, w_gate, w_up, w_down):
        g = torch.einsum('bsd,df->bsf', x, w_gate)
        u = torch.einsum('bsd,df->bsf', x, w_up)
        h = g * u
        return torch.einsum('bsf,fd->bsd', h, w_down)
    x = A_x
    mod = (_silu(c) @ w_mod).reshape(c.shape[0], 6, 1, -1)
    sa, ca, ga, sb, cb, gb = (mod[:, 0].clone(), mod[:, 1].clone(), mod[:, 2].clone(), mod[:, 3].clone(), mod[:, 4].clone(), mod[:, 5].clone())
    h = _layernorm(x, axis=-1) * (1 + ca) + sa
    x = x + ga * _A_ref(h, A_k_cache, A_v_cache, A_wq, A_wo)
    h = _layernorm(x, axis=-1) * (1 + cb) + sb
    x = x + gb * _B_ref(h, B_w_gate, B_w_up, B_w_down)
    return x
```

```python
import re

TRANS = ("v_exp_f32", "v_log_f32", "v_rcp_f32", "v_rsq_f32", "v_sqrt_f32", "v_sin_f32", "v_cos_f32")


def regs_of(op):
    op = op.strip()
    if op.startswith("-"):
        op = op[1:]
    if op.startswith("abs(") and op.endswith(")"):
        op = op[4:-1]
    if op.startswith("|") and op.endswith("|"):
        op = op[1:-1]
    m = re.fullmatch(r"([vsa])\[(\d+):(\d+)\]", op)
    if m:
        return [f"{m.group(1)}{i}" for i in range(int(m.group(2)), int(m.group(3)) + 1)]
    m = re.fullmatch(r"([vsa])(\d+)", op)
    if m:
        return [op]
    if op in ("vcc", "vcc_lo", "vcc_hi"):
        return ["vcc"]
    if op in ("exec", "exec_lo", "exec_hi"):
        return ["exec"]
    if op == "m0":
        return ["m0"]
    return []


class Ins:
    def __init__(self, text):
        self.text = text
        t = text.split(";")[0].strip()
        self.is_label = t.endswith(":")
        self.is_dir = t.startswith(".") or t == ""
        self.mn = ""
        self.ops = []
        self.mods = ""
        if self.is_label or self.is_dir:
            return
        parts = t.split(None, 1)
        self.mn = parts[0]
        rest = parts[1] if len(parts) > 1 else ""
        ops = []
        depth = 0
        cur = ""
        for ch in rest:
            if ch in "[(":
                depth += 1
            if ch in "])":
                depth -= 1
            if ch == "," and depth == 0:
                ops.append(cur.strip())
                cur = ""
            else:
                cur += ch
        if cur.strip():
            ops.append(cur.strip())
        if ops:
            last = ops[-1].split(None, 1)
            ops[-1] = last[0]
            self.mods = last[1] if len(last) > 1 else ""
        self.ops = ops
        mn = self.mn
        self.is_mfma = mn.startswith("v_mfma")
        self.is_valu = mn.startswith("v_") and not self.is_mfma
        self.is_vmem = mn.startswith("buffer_") or mn.startswith("global_")
        self.is_ds = mn.startswith("ds_")
        self.is_salu = mn.startswith("s_")
        self.is_trans = any(mn.startswith(x) for x in TRANS)
        self.is_dpp = ("row_" in self.mods) or ("quad_perm" in self.mods) or mn.endswith("_dpp")
        self.is_permlane = mn.startswith("v_permlane")
        self.is_readlane = mn.startswith("v_readlane") or mn.startswith("v_readfirstlane")
        self.dst = []
        self.src = []
        R = [regs_of(o) for o in ops]
        if self.is_mfma:
            self.dst = R[0]
            self.srcA, self.srcB, self.srcC = R[1], R[2], R[3]
            self.src = R[1] + R[2] + R[3]
            self.passes = 8 if "32x32" in mn else (2 if "4x4x4" in mn else 4)
        elif self.is_valu:
            if self.is_permlane:
                self.dst = R[0] + R[1]
                self.src = R[0] + R[1]
            elif mn.startswith("v_cmp"):
                self.dst = R[0]
                for r in R[1:]:
                    self.src += r
            else:
                self.dst = R[0]
                k = 1
                if mn.startswith(("v_add_co", "v_sub_co", "v_addc_co", "v_subb_co", "v_div_scale")):
                    self.dst = R[0] + R[1]
                    k = 2
                for r in R[k:]:
                    self.src += r
                if mn.startswith(("v_fmac", "v_dot2c", "v_writelane")) or self.is_dpp:
                    self.src += R[0]
                if mn.startswith("v_cndmask") and len(ops) == 3:
                    self.src += ["vcc"]
        elif self.is_vmem:
            if "store" in mn or ("atomic" in mn):
                for r in R:
                    self.src += r
                self.store_data = R[0] if mn.startswith("buffer_") else R[1]
            elif " lds" in (" " + self.mods) or "_lds_" in mn:
                for r in R:
                    self.src += r
                self.src += ["m0"]
            elif mn in ("buffer_inv", "buffer_wbl2"):
                pass
            else:
                self.dst = R[0]
                for r in R[1:]:
                    self.src += r
        elif self.is_ds:
            if mn.startswith(("ds_read", "ds_bpermute", "ds_permute", "ds_swizzle")):
                self.dst = R[0]
                for r in R[1:]:
                    self.src += r
            else:
                for r in R:
                    self.src += r
        elif self.is_salu:
            if mn.startswith(("s_cmp", "s_cbranch", "s_branch", "s_waitcnt", "s_nop", "s_barrier", "s_endpgm", "s_sleep", "s_setprio", "s_bitcmp")):
                for r in R:
                    self.src += r
            else:
                if R:
                    self.dst = R[0]
                for r in R[1:]:
                    self.src += r
                if "saveexec" in mn:
                    self.dst = self.dst + ["exec"]


def states_of(ins):
    if ins.mn == "s_nop":
        return int(ins.ops[0], 0) + 1
    return 1


class Asm:
    def __init__(self):
        self.items = []

    def __call__(self, text):
        for line in text.split("\n"):
            line = line.strip()
            if line:
                self.items.append(line)

    def label(self, name):
        self.items.append(name + ":")

    def comment(self, c):
        self.items.append("; " + c)

    def finish(self):
        out = []
        hist = []
        nops = 0
        for line in self.items:
            if line.startswith(";"):
                out.append("    " + line)
                continue
            ins = Ins(line)
            if ins.is_label:
                out.append(line)
                continue
            if ins.is_dir:
                out.append(line)
                continue
            need = self._need(ins, hist)
            if need > 0:
                while need > 0:
                    k = min(need, 16)
                    nop = Ins(f"s_nop {k-1}")
                    hist.append(nop)
                    out.append(f"    s_nop {k-1}")
                    need -= k
                    nops += 1
            hist.append(ins)
            if len(hist) > 40:
                hist = hist[-40:]
            out.append("    " + line)
        self.nops = nops
        return "\n".join(out) + "\n"

    @staticmethod
    def _need(c, hist):
        need = 0
        dist = 0
        csrc = set(c.src)
        cdst = set(c.dst)
        for p in reversed(hist):
            req = 0
            pd = set(p.dst)
            pv = {r for r in pd if r[0] in "va" and r not in ("vcc",)}
            ps = {r for r in pd if r[0] == "s" or r == "vcc"}
            if p.is_valu:
                if c.is_mfma and pv & csrc:
                    req = max(req, 2)
                if c.is_valu and c.is_dpp and pv & csrc:
                    req = max(req, 2)
                if c.is_valu and c.is_permlane and pv & csrc:
                    req = max(req, 2)
                if c.is_valu and c.is_readlane and pv & csrc:
                    req = max(req, 1)
                if p.is_trans and c.is_valu and not c.is_trans and pv & csrc:
                    req = max(req, 1)
                if p.is_trans and (c.is_mfma or c.is_vmem or c.is_ds) and pv & csrc:
                    req = max(req, 2)
                if ps & csrc:
                    if c.is_valu:
                        req = max(req, 4 if (c.mn.startswith("v_readlane") or c.mn.startswith("v_writelane")) else 2)
                    if c.is_vmem:
                        req = max(req, 5)
                    if c.is_salu:
                        req = max(req, 1)
            if p.is_mfma:
                tab = {2: 5, 4: 8, 8: 12}[p.passes]
                if c.is_mfma:
                    if pd & set(c.srcC):
                        if set(c.srcC) == pd and c.passes == p.passes:
                            req = max(req, 2 if p.passes == 2 else 0)
                        else:
                            req = max(req, {2: 4, 4: 6, 8: 10}[p.passes])
                    if pd & (set(c.srcA) | set(c.srcB)):
                        req = max(req, tab)
                else:
                    if pd & (csrc | cdst):
                        req = max(req, tab)
                if c.is_valu and set(p.srcC) & cdst:
                    req = max(req, {2: 1, 4: 3, 8: 7}[p.passes])
            if p.is_vmem and "store" in p.mn and ("x4" in p.mn or "x3" in p.mn):
                if set(p.store_data) & cdst:
                    req = max(req, 2 if c.is_valu else 1)
            if p.is_salu and "m0" in pd and "m0" in csrc and (c.is_vmem or c.is_ds):
                req = max(req, 1)
            if p.is_salu and "exec" in pd and c.is_mfma:
                req = max(req, 0)
            if req > dist:
                need = max(need, req - dist)
            dist += states_of(p)
            if dist > 24:
                break
        return need
```

```python
import sys, os
sys.path.insert(0, os.path.dirname(os.path.abspath(__file__)))
from asmlib import Asm

NAME = "adaLN_cond__sliding_block_cached__glu_gated_bilinear__decode_kernel"

WS_SIZE = 0x200000
E1 = 0x10000
E2 = 0x20000
E3ML = 0x30000
E3O = 0x40000
E4 = 0x80000
M2B = 0x90000
F1B = 0xA0000
F2B = 0xC0000
PROF = 0x100000

L_RED = 0
L_QS = 16384
L_MLM = 17408
L_MLL = 17536
L_X1 = 18432
L_ZP = 20480
LDS_BYTES = 21504

LOG2E = 0x3FB8AA3B
SCALE = 0x3DB504F3
EPS = 0x3727C5AC

S_G, S_J, S_W = "s3", "s4", "s5"
P_X, P_K, P_V, P_WQ, P_WO, P_GATE, P_UP, P_DOWN, P_C, P_WMOD, P_OUT, P_DBG, P_WS = 16, 18, 20, 22, 24, 28, 30, 32, 34, 36, 38, 40, 42
SRD_WS = "s[44:47]"
S_T = "s60"
S_TB = ["s61", "s62", "s63", "s64"]
S_SELX, S_SELY, S_EPOCH = "s65", "s66", "s67"
S_CNT = "s68"


class Gen:
    def __init__(self, prof=False, st_flags="sc1", ld_flags="sc1", wflags="nt", lds=LDS_BYTES, timeout=1 << 15):
        self.a = Asm()
        self.prof = prof
        self.st = st_flags
        self.ld = ld_flags
        self.wf = wflags
        self.lds = lds
        self.timeout = timeout
        self.uid = 0
        self.nstamp = 0

    def lbl(self, base):
        self.uid += 1
        return f"L_{base}_{self.uid}"

    def stamp(self, idx):
        if self.prof:
            r = 80 + 2 * idx
            self.a(f"s_memrealtime s[{r}:{r+1}]")

    def srd(self, base, ptr, size):
        a = self.a
        a(f"s_mov_b32 s{base}, s{ptr}")
        a(f"s_mov_b32 s{base+1}, s{ptr+1}")
        a(f"s_mov_b32 s{base+2}, {hex(size)}")
        a(f"s_mov_b32 s{base+3}, 0x20000")

    def rb(self, dst, src, tmp=None):
        a = self.a
        t = tmp or dst
        a(f"v_cvt_pk_bf16_f32 {t}, {src}, {src}")
        a(f"v_and_b32 {dst}, 0xffff0000, {t}")

    def swap32(self, x, y):
        self.a(f"v_permlane32_swap_b32 {x}, {y}")

    def swap16(self, x, y):
        self.a(f"v_permlane16_swap_b32 {x}, {y}")

    def tr4(self, c):
        a = self.a
        self.swap32(c[0], c[2])
        self.swap32(c[1], c[3])
        a(f"v_add_f32 {c[0]}, {c[0]}, {c[2]}")
        a(f"v_add_f32 {c[1]}, {c[1]}, {c[3]}")
        self.swap16(c[0], c[1])
        a(f"v_add_f32 {c[0]}, {c[0]}, {c[1]}")

    def dpp(self, op, d, s0, s1, ctl):
        self.a(f"{op}_dpp {d}, {s0}, {s1} {ctl} row_mask:0xf bank_mask:0xf")

    def ror_red(self, op, v, amts):
        for k in amts:
            self.dpp(op, v, v, v, f"row_ror:{k}")

    def xrow_red(self, op, v, tmp):
        a = self.a
        a(f"v_mov_b32 {tmp}, {v}")
        self.swap16(v, tmp)
        a(f"{op} {v}, {v}, {tmp}")
        a(f"v_mov_b32 {tmp}, {v}")
        self.swap32(v, tmp)
        a(f"{op} {v}, {v}, {tmp}")

    def allred(self, op, v, tmp):
        self.ror_red(op, v, (8, 4, 2, 1))
        self.xrow_red(op, v, tmp)

    def check(self, quads, t0, t1, first=True):
        a = self.a
        for b in quads:
            a(f"v_perm_b32 {t0}, v{b+1}, v{b}, {S_SELX}")
            a(f"v_perm_b32 {t1}, v{b+3}, v{b+2}, {S_SELY}")
            a(f"v_or_b32 {t0}, {t0}, {t1}")
            if first:
                a(f"v_cmp_ne_u32 s[70:71], {S_T}, {t0}")
                first = False
            else:
                a(f"v_cmp_ne_u32 vcc, {S_T}, {t0}")
                a("s_or_b64 s[70:71], s[70:71], vcc")

    def strip(self, quads):
        for b in quads:
            for k in range(4):
                self.a(f"v_and_b32 v{b+k}, 0xffffff00, v{b+k}")

    def tagit(self, dstb, srcs):
        for k in range(4):
            self.a(f"v_and_or_b32 v{dstb+k}, {srcs[k]}, v3, {S_TB[k]}")

    def poll(self, name, loads, quads, t0, t1):
        a = self.a
        top = self.lbl(name)
        done = self.lbl(name + "_ok")
        a(f"s_mov_b32 {S_CNT}, 0")
        a.label(top)
        for ld in loads:
            a(ld)
        a("s_waitcnt vmcnt(0)")
        self.check(quads, t0, t1)
        a("s_cmp_eq_u64 s[70:71], 0")
        a(f"s_cbranch_scc1 {done}")
        a(f"s_add_u32 {S_CNT}, {S_CNT}, 1")
        a(f"s_cmp_lt_u32 {S_CNT}, {self.timeout}")
        a(f"s_cbranch_scc1 {top}")
        a("s_branch L_end")
        a.label(done)
        self.strip(quads)

    def gld(self, dst, vaddr, soff="0", off=0):
        o = f" offset:{off}" if off else ""
        return f"buffer_load_dwordx4 v[{dst}:{dst+3}], {vaddr}, {SRD_WS}, {soff} offen{o} {self.ld}"

    def gst(self, src, vaddr, flags=None):
        fl = self.st if flags is None else flags
        self.a(f"buffer_store_dwordx4 v[{src}:{src+3}], {vaddr}, {SRD_WS}, 0 offen {fl}")

    def wld(self, dst, vaddr, srd, soff_imm, sreg="s72"):
        a = self.a
        if soff_imm < 4096:
            o = f" offset:{soff_imm}" if soff_imm else ""
            a(f"buffer_load_dwordx4 v[{dst}:{dst+3}], {vaddr}, {srd}, 0 offen{o} {self.wf}")
        else:
            a(f"s_mov_b32 {sreg}, {hex(soff_imm)}")
            a(f"buffer_load_dwordx4 v[{dst}:{dst+3}], {vaddr}, {srd}, {sreg} offen {self.wf}")

    def delta_mfma(self, acc, hv, t, bregs, aw, first):
        a = self.a
        for r in range(4):
            self.dpp("v_and_b32", f"v{aw+r}", hv, f"v{4+r}", f"row_newbcast:{t}")
        c = "0" if first else f"v[{acc}:{acc+3}]"
        a(f"v_mfma_f32_16x16x32_bf16 v[{acc}:{acc+3}], v[{aw}:{aw+3}], v[{bregs}:{bregs+3}], {c}")

    def exec_lo32(self):
        self.a("s_mov_b32 exec_hi, 0")

    def exec_all(self):
        self.a("s_mov_b64 exec, -1")

    def silu_pack(self, v, t0, t1):
        a = self.a
        a(f"v_lshlrev_b32 {v}, 16, {v}")
        a(f"v_mul_f32 {t0}, 0xbfb8aa3b, {v}")
        a(f"v_exp_f32 {t0}, {t0}")
        a(f"v_add_f32 {t0}, 1.0, {t0}")
        a(f"v_rcp_f32 {t1}, {t0}")
        a(f"v_mul_f32 {t0}, {v}, {t1}")
        a(f"v_cvt_pk_bf16_f32 {v}, {t0}, {t0}")

    def div(self, q, num, den, r, e):
        a = self.a
        a(f"v_rcp_f32 {r}, {den}")
        a(f"v_mul_f32 {q}, {num}, {r}")
        a(f"v_fma_f32 {e}, -{q}, {den}, {num}")
        a(f"v_fma_f32 {q}, {e}, {r}, {q}")

    def ln_stats(self, x8, mean_bf, den, t0, t1, t2):
        a = self.a
        a(f"v_add_f32 {t0}, {x8[0]}, {x8[1]}")
        a(f"v_add_f32 {t1}, {x8[2]}, {x8[3]}")
        a(f"v_add_f32 {t2}, {x8[4]}, {x8[5]}")
        a(f"v_add_f32 {t0}, {t0}, {t1}")
        a(f"v_add_f32 {t1}, {x8[6]}, {x8[7]}")
        a(f"v_add_f32 {t0}, {t0}, {t2}")
        a(f"v_add_f32 {t0}, {t0}, {t1}")
        self.allred("v_add_f32", t0, t1)
        a(f"v_mul_f32 {t0}, 0x3b000000, {t0}")
        for k in range(8):
            a(f"v_sub_f32 {x8[k]}, {x8[k]}, {t0}")
        a(f"v_mul_f32 {t1}, {x8[0]}, {x8[0]}")
        a(f"v_mul_f32 {t2}, {x8[1]}, {x8[1]}")
        for k in range(2, 8, 2):
            a(f"v_fmac_f32 {t1}, {x8[k]}, {x8[k]}")
            a(f"v_fmac_f32 {t2}, {x8[k+1]}, {x8[k+1]}")
        a(f"v_add_f32 {t1}, {t1}, {t2}")
        self.rb(mean_bf, t0)
        self.allred("v_add_f32", t1, t2)
        a(f"v_mul_f32 {t1}, 0x3b000000, {t1}")
        self.rb(t1, t1)
        a(f"v_add_f32 {t1}, {hex(EPS)}, {t1}")
        self.rb(t1, t1)
        a(f"v_sqrt_f32 {t1}, {t1}")
        self.rb(den, t1)

    def ln_apply(self, out, x, mean_bf, den, t0, t1, t2):
        a = self.a
        a(f"v_sub_f32 {t0}, {x}, {mean_bf}")
        self.rb(t0, t0)
        self.div(out, t0, den, t1, t2)
        self.rb(out, out)

    def modulate_pack(self, out, ln, sc, sh, t0):
        a = self.a
        a(f"v_add_f32 {t0}, 1.0, {sc}")
        self.rb(t0, t0)
        a(f"v_mul_f32 {t0}, {ln}, {t0}")
        self.rb(t0, t0)
        a(f"v_add_f32 {t0}, {t0}, {sh}")
        a(f"v_cvt_pk_bf16_f32 {out}, {t0}, {t0}")

    def red_write(self, acc, vaddr, off=0):
        a = self.a
        self.exec_lo32()
        o = f" offset:{off}" if off else ""
        a(f"ds_write_b128 {vaddr}, v[{acc}:{acc+3}]{o}")
        self.exec_all()

    def red_sum8(self, base, vaddr, stride):
        a = self.a
        for k in range(8):
            a(f"ds_read_b128 v[{base+4*k}:{base+4*k+3}], {vaddr} offset:{k*stride}")
        for k in range(1, 8):
            a(f"s_waitcnt lgkmcnt({7-k})")
            for r in range(4):
                a(f"v_add_f32 v{base+r}, v{base+r}, v{base+4*k+r}")

    def prologue(self):
        a = self.a
        a("s_cmp_ge_u32 s2, 256")
        a("s_cbranch_scc1 L_end")
        if self.prof:
            for k in range(80, 98):
                a(f"s_mov_b32 s{k}, 0")
        self.stamp(0)
        a("s_load_dwordx16 s[16:31], s[0:1], 0")
        a("s_load_dwordx8 s[32:39], s[0:1], 64")
        a("s_load_dwordx4 s[40:43], s[0:1], 96")
        a("v_lshrrev_b32 v10, 6, v0")
        a("v_and_b32 v0, 63, v0")
        a("s_and_b32 s3, s2, 7")
        a("s_lshr_b32 s4, s2, 3")
        a("v_readfirstlane_b32 s5, v10")
        a("v_and_b32 v1, 15, v0")
        a("v_lshrrev_b32 v2, 4, v0")
        a("v_mov_b32 v3, 0xffffff00")
        a("v_and_b32 v10, 1, v1")
        a("v_lshlrev_b32 v10, 4, v10")
        a("v_mov_b32 v11, 0xffff")
        a("v_lshlrev_b32 v10, v10, v11")
        a("v_lshrrev_b32 v11, 1, v1")
        for r in range(4):
            a(f"v_cmp_eq_u32 vcc, {r}, v11")
            a(f"v_cndmask_b32 v{4+r}, 0, v10, vcc")
        a("v_and_b32 v11, 1, v11")
        a("v_cmp_eq_u32 vcc, 0, v11")
        a("v_cndmask_b32 v8, 0, v10, vcc")
        a("v_cndmask_b32 v9, v10, 0, vcc")
        a(f"s_mov_b32 {S_SELX}, 0x0c0c0400")
        a(f"s_mov_b32 {S_SELY}, 0x04000c0c")
        a("s_waitcnt lgkmcnt(0)")
        self.srd(44, P_WS, WS_SIZE)
        a(f"s_load_dword {S_EPOCH}, s[{P_WS}:{P_WS+1}], 0")
        a("s_cmp_lt_u32 s4, 16")
        a("s_cbranch_scc1 L_X")

    def make_tag(self):
        a = self.a
        a("s_waitcnt lgkmcnt(0)")
        a(f"s_add_u32 s69, {S_EPOCH}, 1")
        a(f"s_mul_i32 {S_T}, s69, 0x9E3779B1")
        a(f"s_xor_b32 {S_T}, {S_T}, 0x5BD1E995")
        a(f"s_and_b32 {S_TB[0]}, {S_T}, 0xff")
        a(f"s_bfe_u32 {S_TB[1]}, {S_T}, 0x80008")
        a(f"s_bfe_u32 {S_TB[2]}, {S_T}, 0x80010")
        a(f"s_lshr_b32 {S_TB[3]}, {S_T}, 24")

    def role_Y(self):
        a = self.a
        wf = self.wf
        a.label("L_Y")
        a("s_sub_u32 s6, s4, 16")
        self.srd(48, P_WMOD, 3145728)
        self.srd(52, P_WQ, 4194304)
        self.srd(56, P_X, 1024)
        a("v_lshlrev_b32 v10, 4, v1")
        LnoM = self.lbl("noM")
        a("s_cmp_lg_u32 s5, 0")
        a(f"s_cbranch_scc1 {LnoM}")
        self.srd(72 + 4, P_C, 1024)
        a("v_and_b32 v11, 7, v1")
        a("v_lshlrev_b32 v11, 2, v11")
        a("v_add_u32 v11, v11, v2")
        a("s_lshl_b32 s7, s6, 5")
        a("v_add_u32 v11, s7, v11")
        a("v_lshlrev_b32 v11, 1, v11")
        a("buffer_load_ushort v20, v11, s[76:79], 0 offen")
        a("v_mul_u32_u24 v11, 6144, v2")
        a("v_add_u32 v11, v11, v10")
        a("s_mul_i32 s7, s6, 196608")
        a("s_lshl_b32 s8, s3, 8")
        a("s_add_u32 s7, s7, s8")
        a("v_add_u32 v11, s7, v11")
        for t in range(8):
            self.wld(64 + 4 * t, "v11", "s[48:51]", t * 24576)
        a.label(LnoM)
        a("v_lshlrev_b32 v12, 4, v0")
        a("buffer_load_dwordx4 v[48:51], v12, s[56:59], 0 offen")
        a("s_lshr_b32 s8, s6, 2")
        a("s_and_b32 s9, s6, 3")
        a("s_lshl_b32 s10, s8, 7")
        a("s_lshl_b32 s11, s5, 4")
        a("s_add_u32 s10, s10, s11")
        a("v_and_b32 v12, 3, v1")
        a("v_lshlrev_b32 v12, 2, v12")
        a("v_add_u32 v12, v12, v2")
        a("v_add_u32 v12, s10, v12")
        a("v_lshlrev_b32 v12, 1, v12")
        a("buffer_load_ushort v21, v12, s[56:59], 0 offen")
        a("v_lshlrev_b32 v12, 13, v2")
        a("v_add_u32 v12, v12, v10")
        a("s_lshl_b32 s11, s10, 13")
        a("s_lshl_b32 s12, s3, 10")
        a("s_lshl_b32 s13, s9, 8")
        a("s_add_u32 s11, s11, s12")
        a("s_add_u32 s11, s11, s13")
        a("v_add_u32 v12, s11, v12")
        for t in range(4):
            self.wld(32 + 4 * t, "v12", "s[52:55]", t * 32768)
        self.make_tag()
        LnoM2 = self.lbl("noM2")
        a("s_cmp_lg_u32 s5, 0")
        a(f"s_cbranch_scc1 {LnoM2}")
        a("s_waitcnt vmcnt(14)")
        self.silu_pack("v20", "v22", "v23")
        a("s_waitcnt vmcnt(6)")
        for t in range(8):
            self.delta_mfma(60, "v20", t, 64 + 4 * t, 24 + 4 * (t & 1), t == 0)
        a("v_lshlrev_b32 v11, 1, v1")
        a("v_add_u32 v11, v11, v2")
        a("v_lshlrev_b32 v11, 4, v11")
        a("s_lshl_b32 s7, s3, 4")
        a("s_add_u32 s7, s7, s6")
        a("s_lshl_b32 s7, s7, 9")
        a(f"s_add_u32 s7, s7, {hex(E1)}")
        a("v_add_u32 v11, s7, v11")
        self.tagit(16, ["v60", "v61", "v62", "v63"])
        self.exec_lo32()
        self.gst(16, "v11")
        self.exec_all()
        self.stamp(1)
        a.label(LnoM2)
        a("s_waitcnt vmcnt(4)")
        a("s_waitcnt vmcnt(4)")
        xs = [f"v{52+k}" for k in range(8)]
        for k in range(4):
            a(f"v_lshlrev_b32 v{52+2*k}, 16, v{48+k}")
            a(f"v_and_b32 v{53+2*k}, 0xffff0000, v{48+k}")
        self.ln_stats(xs, "v22", "v23", "v24", "v25", "v26")
        a("v_lshlrev_b32 v21, 16, v21")
        self.ln_apply("v21", "v21", "v22", "v23", "v24", "v25", "v26")
        a("v_lshrrev_b32 v11, 2, v0")
        a("v_lshlrev_b32 v11, 9, v11")
        a("v_and_b32 v12, 3, v0")
        a("v_lshlrev_b32 v12, 4, v12")
        a("v_add_u32 v11, v11, v12")
        a("s_lshl_b32 s7, s8, 13")
        a("s_lshl_b32 s12, s5, 6")
        a("s_add_u32 s7, s7, s12")
        a(f"s_add_u32 s7, s7, {hex(E1)}")
        a("v_add_u32 v11, s7, v11")
        a("s_mov_b32 s73, 0x8000")
        self.poll("e1", [self.gld(52, "v11"), self.gld(56, "v11", "s73")], [52, 56], "v24", "v25")
        self.stamp(2)
        for b in (52, 56):
            self.tr4([f"v{b+k}" for k in range(4)])
            self.ror_red("v_add_f32", f"v{b}", (8, 4))
        self.rb("v52", "v52")
        self.rb("v56", "v56")
        self.modulate_pack("v20", "v21", "v56", "v52", "v24")
        for t in range(4):
            self.delta_mfma(60, "v20", t, 32 + 4 * t, 24 + 4 * (t & 1), t == 0)
        a("v_lshlrev_b32 v11, 1, v1")
        a("v_add_u32 v11, v11, v2")
        a("v_lshlrev_b32 v11, 4, v11")
        a("s_lshl_b32 s7, s5, 9")
        a("v_add_u32 v13, s7, v11")
        self.red_write(60, "v13")
        a("s_waitcnt lgkmcnt(0)")
        a("s_barrier")
        Lq = self.lbl("qpub")
        a("s_cmp_lg_u32 s5, 0")
        a(f"s_cbranch_scc1 {Lq}")
        a("v_lshlrev_b32 v11, 4, v0")
        self.red_sum8(32, "v11", 512)
        a("s_lshl_b32 s7, s3, 2")
        a("s_add_u32 s7, s7, s9")
        a("s_lshl_b32 s7, s7, 2")
        a("s_add_u32 s7, s7, s8")
        a("s_lshl_b32 s7, s7, 9")
        a(f"s_add_u32 s7, s7, {hex(E2)}")
        a("v_add_u32 v11, s7, v11")
        self.tagit(16, ["v32", "v33", "v34", "v35"])
        self.exec_lo32()
        self.gst(16, "v11")
        self.exec_all()
        a.label(Lq)
        self.stamp(3)
        a("s_cmp_ge_u32 s6, 8")
        a("s_cbranch_scc1 L_M2")
        self.role_O()
        self.role_M2()

    def role_O(self):
        a = self.a
        a.label("L_O")
        a("s_and_b32 s8, s6, 3")
        a("s_lshr_b32 s9, s6, 2")
        self.srd(48, P_WO, 4194304)
        a("v_lshlrev_b32 v12, 10, v2")
        a("v_add_u32 v12, v12, v10")
        a("s_lshl_b32 s10, s3, 9")
        a("s_lshl_b32 s11, s9, 8")
        a("s_add_u32 s10, s10, s11")
        a("s_lshl_b32 s11, s5, 5")
        a("s_add_u32 s10, s10, s11")
        a("s_lshl_b32 s10, s10, 10")
        a("s_lshl_b32 s11, s8, 8")
        a("s_add_u32 s10, s10, s11")
        a("v_add_u32 v12, s10, v12")
        for t in range(8):
            self.wld(64 + 4 * t, "v12", "s[48:51]", t * 4096)
        a("s_lshl_b32 s10, s9, 1")
        a("s_lshr_b32 s11, s5, 2")
        a("s_add_u32 s10, s10, s11")
        a("s_lshl_b32 s11, s3, 2")
        a("s_add_u32 s10, s10, s11")
        a("v_lshrrev_b32 v11, 2, v0")
        a("v_lshlrev_b32 v13, 9, v11")
        a("v_and_b32 v14, 3, v0")
        a("v_lshlrev_b32 v14, 4, v14")
        a("v_add_u32 v13, v13, v14")
        a("s_lshl_b32 s11, s10, 13")
        a("s_and_b32 s12, s5, 3")
        a("s_lshl_b32 s12, s12, 7")
        a("s_add_u32 s11, s11, s12")
        a(f"s_add_u32 s11, s11, {hex(E3O)}")
        a("v_add_u32 v13, s11, v13")
        a("v_lshlrev_b32 v14, 4, v11")
        a("s_lshl_b32 s11, s10, 8")
        a(f"s_add_u32 s11, s11, {hex(E3ML)}")
        a("v_add_u32 v14, s11, v14")
        self.poll("e3", [self.gld(32, "v13"), self.gld(36, "v13", off=64), self.gld(40, "v14")], [32, 36, 40], "v24", "v25")
        self.stamp(4)
        a("v_mov_b32 v22, v40")
        self.ror_red("v_max_f32", "v22", (8, 4))
        self.xrow_red("v_max_f32", "v22", "v23")
        a("v_sub_f32 v22, v40, v22")
        a(f"v_mul_f32 v22, {hex(LOG2E)}, v22")
        a("v_exp_f32 v22, v22")
        a("v_mul_f32 v23, v22, v41")
        for k in range(8):
            a(f"v_mul_f32 v{32+k}, v{32+k}, v22")
        self.ror_red("v_add_f32", "v23", (8, 4))
        self.xrow_red("v_add_f32", "v23", "v24")
        for b in (32, 36):
            self.tr4([f"v{b+k}" for k in range(4)])
            self.ror_red("v_add_f32", f"v{b}", (8, 4))
        for b, o in ((32, "v20"), (36, "v21")):
            self.div("v26", f"v{b}", "v23", "v24", "v25")
            a(f"v_cvt_pk_bf16_f32 {o}, v26, v26")
        for t in range(8):
            self.delta_mfma(60, "v20" if t < 4 else "v21", t & 3, 64 + 4 * t, 24 + 4 * (t & 1), t == 0)
        a("v_lshlrev_b32 v11, 1, v1")
        a("v_add_u32 v11, v11, v2")
        a("v_lshlrev_b32 v11, 4, v11")
        a("s_lshl_b32 s7, s5, 9")
        a("v_add_u32 v13, s7, v11")
        self.red_write(60, "v13")
        a("s_waitcnt lgkmcnt(0)")
        a("s_barrier")
        a("s_cmp_lg_u32 s5, 0")
        a("s_cbranch_scc1 L_fin")
        a("v_lshlrev_b32 v11, 4, v0")
        self.red_sum8(32, "v11", 512)
        a("s_lshl_b32 s7, s3, 1")
        a("s_add_u32 s7, s7, s9")
        a("s_lshl_b32 s7, s7, 11")
        a("s_lshl_b32 s10, s8, 9")
        a("s_add_u32 s7, s7, s10")
        a(f"s_add_u32 s7, s7, {hex(E4)}")
        a("v_add_u32 v11, s7, v11")
        self.tagit(16, ["v32", "v33", "v34", "v35"])
        self.exec_lo32()
        self.gst(16, "v11")
        self.exec_all()
        self.stamp(5)
        a("s_branch L_fin")

    def role_M2(self):
        a = self.a
        a.label("L_M2")
        a("s_sub_u32 s7, s6, 8")
        a("s_and_b32 s8, s7, 3")
        a("s_lshr_b32 s9, s7, 2")
        a("s_lshl_b32 s10, s3, 1")
        a("s_add_u32 s9, s9, s10")
        self.srd(76, P_C, 1024)
        a("s_lshl_b32 s10, s8, 7")
        a("s_lshl_b32 s11, s5, 4")
        a("s_add_u32 s10, s10, s11")
        a("v_and_b32 v12, 3, v1")
        a("v_lshlrev_b32 v12, 2, v12")
        a("v_add_u32 v12, v12, v2")
        a("v_add_u32 v12, s10, v12")
        a("v_lshlrev_b32 v12, 1, v12")
        a("buffer_load_ushort v20, v12, s[76:79], 0 offen")
        a("v_mul_u32_u24 v12, 6144, v2")
        a("v_add_u32 v12, v12, v10")
        a("s_mul_i32 s11, s10, 6144")
        a("s_lshl_b32 s12, s9, 8")
        a("s_add_u32 s11, s11, s12")
        a("s_add_u32 s11, s11, 2048")
        a("v_add_u32 v12, s11, v12")
        for t in range(4):
            self.wld(32 + 4 * t, "v12", "s[48:51]", t * 24576)
        a("s_waitcnt vmcnt(4)")
        self.silu_pack("v20", "v22", "v23")
        a("s_waitcnt vmcnt(0)")
        for t in range(4):
            self.delta_mfma(60, "v20", t, 32 + 4 * t, 24 + 4 * (t & 1), t == 0)
        a("v_lshlrev_b32 v11, 1, v1")
        a("v_add_u32 v11, v11, v2")
        a("v_lshlrev_b32 v11, 4, v11")
        a("s_lshl_b32 s7, s5, 9")
        a("v_add_u32 v13, s7, v11")
        self.red_write(60, "v13", off=4096)
        a("s_waitcnt lgkmcnt(0)")
        a("s_barrier")
        a("s_cmp_lg_u32 s5, 0")
        a("s_cbranch_scc1 L_fin")
        a("v_lshlrev_b32 v11, 4, v0")
        a("v_add_u32 v13, 4096, v11")
        self.red_sum8(32, "v13", 512)
        a("s_lshl_b32 s7, s9, 2")
        a("s_add_u32 s7, s7, s8")
        a("s_lshl_b32 s7, s7, 9")
        a(f"s_add_u32 s7, s7, {hex(M2B)}")
        a("v_add_u32 v11, s7, v11")
        self.tagit(16, ["v32", "v33", "v34", "v35"])
        self.exec_lo32()
        self.gst(16, "v11")
        self.exec_all()
        self.stamp(5)
        a("s_branch L_fin")

    def role_X(self):
        a = self.a
        a.label("L_X")
        a("s_mov_b32 s6, s4")
        self.srd(48, P_K, 67108864)
        self.srd(52, P_V, 67108864)
        a("s_lshl_b32 s7, s6, 8")
        a("s_lshl_b32 s8, s5, 5")
        a("s_add_u32 s7, s7, s8")
        a("s_add_u32 s7, s7, 28672")
        a("s_lshl_b32 s7, s7, 8")
        a("s_lshl_b32 s8, s3, 23")
        a("s_add_u32 s7, s7, s8")
        a("v_lshlrev_b32 v10, 8, v1")
        a("v_lshlrev_b32 v11, 4, v2")
        a("v_add_u32 v10, v10, v11")
        a("v_add_u32 v10, s7, v10")
        a("v_lshlrev_b32 v11, 10, v2")
        a("v_lshlrev_b32 v12, 4, v1")
        a("v_add_u32 v11, v11, v12")
        a("v_add_u32 v11, s7, v11")
        a("s_mov_b32 s73, 4096")
        wf = self.wf
        for u in range(2):
            for m in range(4):
                so = "0" if u == 0 else "s73"
                o = f" offset:{64*m}" if m else ""
                a(f"buffer_load_dwordx4 v[{32+16*u+4*m}:{35+16*u+4*m}], v10, s[48:51], {so} offen{o} {wf}")
        for u in range(2):
            for r in range(4):
                so = "0" if u == 0 else "s73"
                o = f" offset:{256*r}" if r else ""
                a(f"buffer_load_dwordx4 v[{64+16*u+4*r}:{67+16*u+4*r}], v11, s[52:55], {so} offen{o} {wf}")
        self.make_tag()
        a("s_lshr_b32 s8, s5, 1")
        a("s_and_b32 s9, s5, 1")
        a("s_lshl_b32 s10, s3, 2")
        a("s_add_u32 s10, s10, s8")
        a("s_lshl_b32 s10, s10, 11")
        a("s_lshl_b32 s11, s9, 8")
        a("s_add_u32 s10, s10, s11")
        a(f"s_add_u32 s10, s10, {hex(E2)}")
        a("v_lshlrev_b32 v12, 9, v2")
        a("v_lshlrev_b32 v13, 4, v1")
        a("v_add_u32 v12, v12, v13")
        a("v_add_u32 v12, s10, v12")
        self.poll("e2", [self.gld(96, "v12")], [96], "v24", "v25")
        self.stamp(2)
        self.tr4(["v96", "v97", "v98", "v99"])
        a("v_cvt_pk_bf16_f32 v96, v96, v96")
        a("s_lshl_b32 s10, s8, 8")
        a("s_lshl_b32 s11, s9, 7")
        a("s_add_u32 s10, s10, s11")
        a(f"s_add_u32 s10, s10, {L_QS}")
        a("v_lshlrev_b32 v12, 3, v1")
        a("v_lshlrev_b32 v13, 1, v2")
        a("v_add_u32 v12, v12, v13")
        a("v_add_u32 v12, s10, v12")
        a("ds_write_b16 v12, v96")
        a("s_waitcnt lgkmcnt(0)")
        a("s_barrier")
        a("v_lshrrev_b32 v12, 2, v1")
        a("v_lshlrev_b32 v12, 8, v12")
        a("v_lshlrev_b32 v13, 4, v2")
        a("v_add_u32 v12, v12, v13")
        for m in range(4):
            a(f"ds_read_b128 v[{104+4*m}:{107+4*m}], v12 offset:{L_QS + 64*m}")
        a("s_waitcnt lgkmcnt(0)")
        for u in range(2):
            for m in range(4):
                c = "0" if m == 0 else f"v[{96+4*u}:{99+4*u}]"
                a(f"v_mfma_f32_16x16x32_bf16 v[{96+4*u}:{99+4*u}], v[{32+16*u+4*m}:{35+16*u+4*m}], v[{104+4*m}:{107+4*m}], {c}")
        for f in range(9):
            a(f"v_mov_b32 v{30+4*f}, 0")
            a(f"v_mov_b32 v{31+4*f}, 0")
        S = [f"v{96+k}" for k in range(8)]
        for s in S:
            self.rb(s, s)
        for s in S:
            a(f"v_mul_f32 {s}, {hex(SCALE)}, {s}")
        for s in S:
            self.rb(s, s)
        a("v_max3_f32 v14, v96, v97, v98")
        a("v_max3_f32 v15, v99, v100, v101")
        a("v_max3_f32 v14, v14, v102, v103")
        a("v_max_f32 v14, v14, v15")
        self.xrow_red("v_max_f32", "v14", "v15")
        for s in S:
            a(f"v_sub_f32 {s}, {s}, v14")
        for s in S:
            a(f"v_mul_f32 {s}, {hex(LOG2E)}, {s}")
        for s in S:
            a(f"v_exp_f32 {s}, {s}")
        a("v_add_f32 v15, v96, v97")
        a("v_add_f32 v16, v98, v99")
        a("v_add_f32 v17, v100, v101")
        a("v_add_f32 v18, v102, v103")
        a("v_add_f32 v15, v15, v16")
        a("v_add_f32 v17, v17, v18")
        a("v_add_f32 v15, v15, v17")
        for f in range(8):
            a(f"v_cvt_pk_bf16_f32 v{96+f}, v{96+f}, v{96+f}")
        for f in range(8):
            a(f"v_and_b32 v{32+4*f}, v{96+f}, v8")
            a(f"v_and_b32 v{33+4*f}, v{96+f}, v9")
        for f in range(8):
            vb = 64 + 4 * f
            c0 = "0" if f == 0 else "v[104:107]"
            c1 = "0" if f == 0 else "v[108:111]"
            a(f"v_mfma_f32_16x16x32_bf16 v[104:107], v[{32+4*f}:{35+4*f}], v[{vb}:{vb+3}], {c0}")
            a(f"v_mfma_f32_16x16x32_bf16 v[108:111], v[{30+4*f}:{33+4*f}], v[{vb}:{vb+3}], {c1}")
        self.xrow_red("v_add_f32", "v15", "v16")
        a("v_lshrrev_b32 v12, 2, v1")
        a("v_lshlrev_b32 v12, 5, v12")
        a("s_lshl_b32 s10, s5, 2")
        a("v_add_u32 v12, s10, v12")
        a(f"ds_write_b32 v12, v14 offset:{L_MLM}")
        a(f"ds_write_b32 v12, v15 offset:{L_MLL}")
        a("v_lshlrev_b32 v12, 9, v2")
        a("v_lshlrev_b32 v13, 5, v1")
        a("v_add_u32 v12, v12, v13")
        a("s_lshl_b32 s10, s5, 11")
        a("v_add_u32 v12, s10, v12")
        a("ds_write_b128 v12, v[104:107]")
        a("ds_write_b128 v12, v[108:111] offset:16")
        a("s_waitcnt lgkmcnt(0)")
        a("s_barrier")
        Lr = self.lbl("ared")
        a("s_cmp_ge_u32 s5, 2")
        a(f"s_cbranch_scc1 {Lr}")
        a("s_lshl_b32 s10, s5, 6")
        a("v_add_u32 v12, s10, v0")
        a("v_lshrrev_b32 v13, 5, v12")
        a("v_lshlrev_b32 v14, 5, v13")
        a(f"ds_read_b128 v[16:19], v14 offset:{L_MLM}")
        a(f"ds_read_b128 v[20:23], v14 offset:{L_MLM+16}")
        a(f"ds_read_b128 v[24:27], v14 offset:{L_MLL}")
        a(f"ds_read_b128 v[28:31], v14 offset:{L_MLL+16}")
        a("v_lshlrev_b32 v14, 4, v12")
        for k in range(8):
            a(f"ds_read_b128 v[{32+4*k}:{35+4*k}], v14 offset:{k*2048}")
        a("s_waitcnt lgkmcnt(8)")
        a("v_max3_f32 v64, v16, v17, v18")
        a("v_max3_f32 v65, v19, v20, v21")
        a("v_max3_f32 v64, v64, v22, v23")
        a("v_max_f32 v64, v64, v65")
        for k in range(8):
            a(f"v_sub_f32 v{16+k}, v{16+k}, v64")
        for k in range(8):
            a(f"v_mul_f32 v{16+k}, {hex(LOG2E)}, v{16+k}")
        for k in range(8):
            a(f"v_exp_f32 v{16+k}, v{16+k}")
        a("v_mul_f32 v65, v16, v24")
        for k in range(1, 8):
            a(f"v_fmac_f32 v65, v{16+k}, v{24+k}")
        a("s_waitcnt lgkmcnt(0)")
        for r in range(4):
            a(f"v_mul_f32 v{68+r}, v16, v{32+r}")
        for k in range(1, 8):
            for r in range(4):
                a(f"v_fmac_f32 v{68+r}, v{16+k}, v{32+4*k+r}")
        a("s_lshl_b32 s10, s3, 2")
        a("v_add_u32 v13, s10, v13")
        a("v_lshlrev_b32 v13, 4, v13")
        a("v_add_u32 v13, s6, v13")
        a("v_lshlrev_b32 v14, 9, v13")
        a("v_and_b32 v15, 31, v12")
        a("v_lshlrev_b32 v66, 4, v15")
        a("v_add_u32 v14, v14, v66")
        a(f"v_add_u32 v14, {hex(E3O)}, v14")
        self.tagit(72, ["v68", "v69", "v70", "v71"])
        self.gst(72, "v14")
        a("v_lshlrev_b32 v13, 4, v13")
        a(f"v_add_u32 v13, {hex(E3ML)}, v13")
        a("v_mov_b32 v66, 0")
        self.tagit(76, ["v64", "v65", "v66", "v66"])
        a("v_cmp_eq_u32 vcc, 0, v15")
        a("s_and_saveexec_b64 s[74:75], vcc")
        self.gst(76, "v13")
        a("s_mov_b64 exec, s[74:75]")
        a.label(Lr)
        self.stamp(3)
        a("s_cmp_eq_u32 s3, 7")
        a("s_cbranch_scc1 L_Z")
        self.role_F()
        self.role_Z()

    def role_F(self):
        a = self.a
        a.label("L_F")
        a("s_lshr_b32 s8, s6, 3")
        a("s_lshl_b32 s9, s3, 1")
        a("s_add_u32 s8, s8, s9")
        a("s_and_b32 s9, s6, 7")
        self.srd(48, P_GATE, 1835008)
        self.srd(52, P_UP, 1835008)
        self.srd(56, P_DOWN, 1835008)
        self.srd(76, P_X, 1024)
        a("v_lshlrev_b32 v10, 4, v1")
        a("v_mul_u32_u24 v12, 3584, v2")
        a("v_add_u32 v12, v12, v10")
        a("s_lshl_b32 s10, s9, 6")
        a("s_lshl_b32 s11, s5, 3")
        a("s_add_u32 s10, s10, s11")
        a("s_mul_i32 s11, s10, 3584")
        a("s_lshl_b32 s12, s8, 8")
        a("s_add_u32 s11, s11, s12")
        a("v_add_u32 v12, s11, v12")
        for t in range(2):
            self.wld(32 + 4 * t, "v12", "s[48:51]", t * 14336)
        for t in range(2):
            self.wld(40 + 4 * t, "v12", "s[52:55]", t * 14336)
        Lnd = self.lbl("nodown")
        a("s_cmp_ge_u32 s5, 4")
        a(f"s_cbranch_scc1 {Lnd}")
        a("v_lshlrev_b32 v12, 10, v2")
        a("v_add_u32 v12, v12, v10")
        a("s_lshl_b32 s11, s8, 7")
        a("s_lshl_b32 s12, s9, 4")
        a("s_add_u32 s11, s11, s12")
        a("s_lshl_b32 s11, s11, 10")
        a("s_lshl_b32 s12, s5, 8")
        a("s_add_u32 s11, s11, s12")
        a("v_add_u32 v12, s11, v12")
        for t in range(4):
            self.wld(48 + 4 * t, "v12", "s[56:59]", t * 4096)
        a.label(Lnd)
        a("s_lshl_b32 s11, s5, 4")
        a("v_add_u32 v13, s11, v1")
        a("v_lshlrev_b32 v14, 2, v13")
        a("v_add_u32 v14, v14, v2")
        a("v_lshlrev_b32 v15, 1, v14")
        a("buffer_load_ushort v21, v15, s[76:79], 0 offen")
        a("v_lshrrev_b32 v15, 5, v13")
        a("v_lshlrev_b32 v15, 2, v15")
        a("v_add_u32 v15, v15, v2")
        a("v_lshlrev_b32 v15, 5, v15")
        a("v_and_b32 v16, 31, v13")
        a("v_add_u32 v15, v15, v16")
        a("v_lshlrev_b32 v15, 4, v15")
        a(f"v_add_u32 v15, {hex(M2B)}, v15")
        a("s_lshl_b32 s11, s9, 4")
        a("s_lshl_b32 s12, s5, 1")
        a("s_add_u32 s11, s11, s12")
        a("v_and_b32 v16, 1, v1")
        a("v_add_u32 v16, s11, v16")
        a("v_lshrrev_b32 v17, 1, v1")
        a("v_and_b32 v17, 1, v17")
        a("v_lshlrev_b32 v17, 2, v17")
        a("v_lshrrev_b32 v18, 5, v16")
        a("v_add3_u32 v17, v17, v18, 4")
        a("v_lshlrev_b32 v17, 2, v17")
        a("v_add_u32 v17, v17, v2")
        a("v_lshlrev_b32 v17, 5, v17")
        a("v_and_b32 v16, 31, v16")
        a("v_add_u32 v17, v17, v16")
        a("v_lshlrev_b32 v17, 4, v17")
        a(f"v_add_u32 v17, {hex(M2B)}, v17")
        self.poll("m2", [self.gld(64, "v15"), self.gld(68, "v17")], [64, 68], "v24", "v25")
        self.tr4(["v64", "v65", "v66", "v67"])
        self.rb("v64", "v64")
        self.tr4(["v68", "v69", "v70", "v71"])
        self.rb("v68", "v68")
        a("v_mov_b32_dpp v69, v68 quad_perm:[2,3,0,1] row_mask:0xf bank_mask:0xf")
        a("v_lshlrev_b32 v15, 11, v2")
        a("v_lshlrev_b32 v16, 4, v13")
        a("v_add_u32 v15, v15, v16")
        a(f"v_add_u32 v15, {hex(E4)}, v15")
        a("s_mov_b32 s73, 0x2000")
        a("s_mov_b32 s74, 0x4000")
        a("s_mov_b32 s75, 0x6000")
        self.poll("e4", [self.gld(72, "v15"), self.gld(76, "v15", "s73"), self.gld(80, "v15", "s74"), self.gld(84, "v15", "s75")],
                  [72, 76, 80, 84], "v24", "v25")
        self.stamp(4)
        for r in range(4):
            a(f"v_add_f32 v{72+r}, v{72+r}, v{76+r}")
            a(f"v_add_f32 v{80+r}, v{80+r}, v{84+r}")
        for r in range(4):
            a(f"v_add_f32 v{72+r}, v{72+r}, v{80+r}")
        self.tr4(["v72", "v73", "v74", "v75"])
        self.rb("v72", "v72")
        a("v_mul_f32 v72, v64, v72")
        self.rb("v72", "v72")
        a("v_lshlrev_b32 v21, 16, v21")
        a("v_add_f32 v72, v21, v72")
        self.rb("v72", "v72")
        a("v_lshlrev_b32 v15, 2, v14")
        a(f"ds_write_b32 v15, v72 offset:{L_X1}")
        a("s_waitcnt lgkmcnt(0)")
        a("s_barrier")
        a("v_lshlrev_b32 v15, 5, v0")
        a(f"ds_read_b128 v[72:75], v15 offset:{L_X1}")
        a(f"ds_read_b128 v[76:79], v15 offset:{L_X1+16}")
        a("v_and_b32 v16, 1, v1")
        a("v_lshlrev_b32 v16, 2, v16")
        a("v_add_u32 v16, v16, v2")
        a("v_add_u32 v16, s10, v16")
        a("v_lshlrev_b32 v16, 2, v16")
        a(f"ds_read_b32 v21, v16 offset:{L_X1}")
        a("s_waitcnt lgkmcnt(0)")
        self.ln_stats([f"v{72+k}" for k in range(8)], "v22", "v23", "v24", "v25", "v26")
        self.ln_apply("v21", "v21", "v22", "v23", "v24", "v25", "v26")
        self.modulate_pack("v20", "v21", "v69", "v68", "v24")
        for t in range(2):
            self.delta_mfma(88, "v20", t, 32 + 4 * t, 24, t == 0)
            c = "0" if t == 0 else "v[92:95]"
            a(f"v_mfma_f32_16x16x32_bf16 v[92:95], v[24:27], v[{40+4*t}:{43+4*t}], {c}")
            if t == 0:
                a("s_nop 1")
        a("v_lshlrev_b32 v11, 1, v1")
        a("v_add_u32 v11, v11, v2")
        a("v_lshlrev_b32 v11, 4, v11")
        a("s_lshl_b32 s7, s5, 10")
        a("v_add_u32 v13, s7, v11")
        self.exec_lo32()
        a("ds_write_b128 v13, v[88:91]")
        a("ds_write_b128 v13, v[92:95] offset:512")
        self.exec_all()
        a("s_waitcnt lgkmcnt(0)")
        a("s_barrier")
        Lp = self.lbl("f1pub")
        a("s_cmp_lg_u32 s5, 0")
        a(f"s_cbranch_scc1 {Lp}")
        a("v_lshlrev_b32 v11, 4, v0")
        self.red_sum8(64, "v11", 1024)
        a("s_lshl_b32 s7, s8, 3")
        a("s_add_u32 s7, s7, s9")
        a("s_lshl_b32 s7, s7, 10")
        a(f"s_add_u32 s7, s7, {hex(F1B)}")
        a("v_add_u32 v11, s7, v11")
        self.tagit(16, ["v64", "v65", "v66", "v67"])
        self.gst(16, "v11")
        a.label(Lp)
        self.stamp(5)
        a("s_cmp_ge_u32 s5, 4")
        a("s_cbranch_scc1 L_fin")
        a("v_lshrrev_b32 v11, 3, v0")
        a("v_lshlrev_b32 v11, 10, v11")
        a("v_lshrrev_b32 v12, 2, v0")
        a("v_and_b32 v12, 1, v12")
        a("v_lshlrev_b32 v12, 9, v12")
        a("v_add_u32 v11, v11, v12")
        a("v_and_b32 v12, 3, v0")
        a("v_lshlrev_b32 v12, 4, v12")
        a("v_add_u32 v11, v11, v12")
        a("s_lshl_b32 s7, s8, 13")
        a("s_lshl_b32 s10, s9, 6")
        a("s_add_u32 s7, s7, s10")
        a(f"s_add_u32 s7, s7, {hex(F1B)}")
        a("v_add_u32 v11, s7, v11")
        self.poll("e4b", [self.gld(64, "v11")], [64], "v24", "v25")
        self.stamp(6)
        self.tr4(["v64", "v65", "v66", "v67"])
        self.ror_red("v_add_f32", "v64", (8,))
        self.rb("v64", "v64")
        a("v_mov_b32_dpp v65, v64 row_ror:4 row_mask:0xf bank_mask:0xf")
        a("v_mul_f32 v64, v64, v65")
        a("v_cvt_pk_bf16_f32 v20, v64, v64")
        for t in range(4):
            self.delta_mfma(88, "v20", t, 48 + 4 * t, 24 + 4 * (t & 1), t == 0)
        a("v_lshlrev_b32 v11, 1, v1")
        a("v_add_u32 v11, v11, v2")
        a("v_lshlrev_b32 v11, 4, v11")
        a("s_lshl_b32 s7, s8, 3")
        a("s_add_u32 s7, s7, s9")
        a("s_lshl_b32 s7, s7, 11")
        a("s_lshl_b32 s10, s5, 9")
        a("s_add_u32 s7, s7, s10")
        a(f"s_add_u32 s7, s7, {hex(F2B)}")
        a("v_add_u32 v11, s7, v11")
        self.tagit(16, ["v88", "v89", "v90", "v91"])
        self.exec_lo32()
        self.gst(16, "v11")
        self.exec_all()
        self.stamp(7)
        a("s_branch L_fin")

    def role_Z(self):
        a = self.a
        a.label("L_Z")
        a("v_lshrrev_b32 v11, 3, v0")
        a("v_and_b32 v12, 7, v0")
        a("s_lshl_b32 s8, s6, 3")
        a("v_add_u32 v13, s8, v12")
        a("v_lshlrev_b32 v13, 4, v13")
        a("s_cmp_eq_u32 s5, 7")
        a("s_cbranch_scc1 L_Z7")
        a("v_lshlrev_b32 v14, 11, v11")
        a("v_add_u32 v14, v14, v13")
        a("s_lshl_b32 s9, s5, 15")
        a(f"s_add_u32 s9, s9, {hex(F2B)}")
        a("v_add_u32 v14, s9, v14")
        a("s_mov_b32 s73, 0x4000")
        self.poll("e5", [self.gld(32, "v14"), self.gld(36, "v14", "s73")], [32, 36], "v24", "v25")
        self.stamp(6)
        for r in range(4):
            a(f"v_add_f32 v{32+r}, v{32+r}, v{36+r}")
        self.tr4(["v32", "v33", "v34", "v35"])
        self.ror_red("v_add_f32", "v32", (8,))
        a("v_lshlrev_b32 v14, 4, v12")
        a("v_lshlrev_b32 v15, 2, v2")
        a("v_add_u32 v14, v14, v15")
        a("s_lshl_b32 s9, s5, 7")
        a("v_add_u32 v14, s9, v14")
        a(f"ds_write_b32 v14, v32 offset:{L_ZP}")
        a("s_waitcnt lgkmcnt(0)")
        a("s_barrier")
        a("s_branch L_fin")
        a.label("L_Z7")
        self.srd(76, P_X, 1024)
        self.srd(48, P_OUT, 1024)
        a("v_lshlrev_b32 v14, 2, v12")
        a("v_add_u32 v14, v14, v2")
        a("s_lshl_b32 s9, s6, 5")
        a("v_add_u32 v14, s9, v14")
        a("v_lshlrev_b32 v15, 1, v14")
        a("buffer_load_ushort v21, v15, s[76:79], 0 offen")
        a("v_add_u32 v16, s8, v12")
        a("v_lshrrev_b32 v17, 5, v16")
        a("v_and_b32 v18, 1, v11")
        a("v_mul_u32_u24 v18, 12, v18")
        a("v_add_u32 v17, v17, v18")
        a("v_lshlrev_b32 v17, 2, v17")
        a("v_add_u32 v17, v17, v2")
        a("v_lshlrev_b32 v17, 5, v17")
        a("v_and_b32 v16, 31, v16")
        a("v_add_u32 v17, v17, v16")
        a("v_lshlrev_b32 v17, 4, v17")
        a(f"v_add_u32 v17, {hex(M2B)}, v17")
        self.poll("zm2", [self.gld(40, "v17")], [40], "v24", "v25")
        self.tr4(["v40", "v41", "v42", "v43"])
        self.rb("v40", "v40")
        a("v_mov_b32_dpp v41, v40 row_ror:8 row_mask:0xf bank_mask:0xf")
        a("v_lshlrev_b32 v16, 11, v11")
        a("v_add_u32 v16, v16, v13")
        a(f"v_add_u32 v16, {hex(E4)}, v16")
        a("s_mov_b32 s73, 0x4000")
        self.poll("ze4", [self.gld(32, "v16"), self.gld(36, "v16", "s73")], [32, 36], "v24", "v25")
        for r in range(4):
            a(f"v_add_f32 v{32+r}, v{32+r}, v{36+r}")
        self.tr4(["v32", "v33", "v34", "v35"])
        self.ror_red("v_add_f32", "v32", (8,))
        self.rb("v32", "v32")
        a("v_mul_f32 v32, v40, v32")
        self.rb("v32", "v32")
        a("v_lshlrev_b32 v21, 16, v21")
        a("v_add_f32 v32, v21, v32")
        self.rb("v32", "v32")
        a("s_barrier")
        a("v_lshlrev_b32 v16, 4, v12")
        a("v_lshlrev_b32 v17, 2, v2")
        a("v_add_u32 v16, v16, v17")
        for k in range(7):
            a(f"ds_read_b32 v{48+k}, v16 offset:{L_ZP + 128*k}")
        a("s_waitcnt lgkmcnt(0)")
        a("v_add_f32 v48, v48, v49")
        a("v_add_f32 v50, v50, v51")
        a("v_add_f32 v52, v52, v53")
        a("v_add_f32 v48, v48, v50")
        a("v_add_f32 v52, v52, v54")
        a("v_add_f32 v48, v48, v52")
        self.rb("v48", "v48")
        a("v_mul_f32 v48, v41, v48")
        self.rb("v48", "v48")
        a("v_add_f32 v48, v32, v48")
        a("v_cvt_pk_bf16_f32 v48, v48, v48")
        a("v_and_b32 v18, 1, v11")
        a("v_cmp_eq_u32 vcc, 0, v18")
        a("s_and_saveexec_b64 s[74:75], vcc")
        a("buffer_store_short v48, v15, s[48:51], 0 offen")
        a("s_mov_b64 exec, s[74:75]")
        self.stamp(7)
        a("s_cmp_lg_u32 s6, 0")
        a("s_cbranch_scc1 L_fin")
        a(f"s_add_u32 s69, {S_EPOCH}, 1")
        a("v_mov_b32 v16, s69")
        a("v_mov_b32 v17, 0")
        a("v_cmp_eq_u32 vcc, 0, v0")
        a("s_and_saveexec_b64 s[74:75], vcc")
        a(f"buffer_store_dword v16, v17, {SRD_WS}, 0 offen")
        a("s_mov_b64 exec, s[74:75]")
        a("s_branch L_fin")

    def epilogue(self):
        a = self.a
        a.label("L_fin")
        if self.prof:
            a("s_waitcnt lgkmcnt(0)")
            a("s_memrealtime s[96:97]")
            a("s_lshl_b32 s7, s2, 3")
            a("s_add_u32 s7, s7, s5")
            a("s_lshl_b32 s7, s7, 6")
            a(f"s_add_u32 s7, s7, {hex(PROF)}")
            a("s_waitcnt lgkmcnt(0)")
            a("v_mov_b32 v11, s7")
            for k0 in (0, 4):
                for k in range(4):
                    a(f"v_mov_b32 v{12+k}, s{80+2*(k0+k)}")
                a("s_mov_b64 exec, 1")
                a(f"buffer_store_dwordx4 v[12:15], v11, {SRD_WS}, 0 offen offset:{k0*4}")
                a("s_mov_b64 exec, -1")
                a("s_nop 1")
            a("v_mov_b32 v12, s96")
            a("s_mov_b64 exec, 1")
            a(f"buffer_store_dword v12, v11, {SRD_WS}, 0 offen offset:32")
        a.label("L_end")
        a("s_endpgm")

    def build(self):
        a = self.a
        if self.prof:
            pass
        self.prologue()
        self.role_Y()
        self.role_X()
        self.epilogue()
        body = a.finish()
        hdr = open("adaLN_cond__sliding_block_cached__glu_gated_bilinear__decode.s.ref").read().split("\n")
        head = []
        for line in hdr:
            if line.startswith("; @launch"):
                head.append(f"; @launch grid=(256,1,1) block=(512,1,1) lds={self.lds}")
            elif line.startswith(";"):
                head.append(line)
            else:
                break
        txt = "\n".join(head) + "\n"
        txt += '.amdgcn_target "amdgcn-amd-amdhsa--gfx950"\n.text\n'
        txt += f".globl {NAME}\n.p2align 8\n.type {NAME},@function\n{NAME}:\n"
        txt += body
        txt += f"""
.section .rodata,"a"
.p2align 6
.amdhsa_kernel {NAME}
  .amdhsa_next_free_vgpr 120
  .amdhsa_next_free_sgpr 100
  .amdhsa_accum_offset 120
  .amdhsa_group_segment_fixed_size 0
  .amdhsa_kernarg_size 112
  .amdhsa_user_sgpr_count 2
  .amdhsa_user_sgpr_kernarg_segment_ptr 1
  .amdhsa_system_sgpr_workgroup_id_x 1
  .amdhsa_float_denorm_mode_32 3
.end_amdhsa_kernel
"""
        return txt


if __name__ == "__main__":
    import argparse
    ap = argparse.ArgumentParser()
    ap.add_argument("-o", default="adaLN_cond__sliding_block_cached__glu_gated_bilinear__decode.s")
    ap.add_argument("--prof", action="store_true")
    ap.add_argument("--lds", type=int, default=LDS_BYTES)
    ap.add_argument("--wf", default="nt")
    args = ap.parse_args()
    g = Gen(prof=args.prof, lds=args.lds, wflags=args.wf)
    txt = g.build()
    open(args.o, "w").write(txt)
    print("written", args.o, "lines", txt.count("\n"), "nops", g.a.nops)
```

```python
import sys, os
sys.path.insert(0, os.path.dirname(os.path.abspath(__file__)))
from asmlib import Asm

NAME = "adaLN_cond__sliding_block_cached__glu_gated_bilinear__decode_kernel"

WS_SIZE = 0x200000
E1 = 0x10000
E2 = 0x20000
E3ML = 0x30000
E3O = 0x40000
E4 = 0x80000
M2B = 0x90000
F1B = 0xA0000
F2B = 0xC0000
PROF = 0x100000

L_RED = 0
L_QS = 16384
L_MLM = 17408
L_MLL = 17536
L_X1 = 18432
L_ZP = 20480
LDS_BYTES = 21504

LOG2E = 0x3FB8AA3B
SCALE = 0x3DB504F3
EPS = 0x3727C5AC

S_G, S_J, S_W = "s3", "s4", "s5"
P_X, P_K, P_V, P_WQ, P_WO, P_GATE, P_UP, P_DOWN, P_C, P_WMOD, P_OUT, P_DBG, P_WS = 16, 18, 20, 22, 24, 28, 30, 32, 34, 36, 38, 40, 42
SRD_WS = "s[44:47]"
S_T = "s60"
S_TB = ["s61", "s62", "s63", "s64"]
S_SELX, S_SELY, S_EPOCH = "s65", "s66", "s67"
S_CNT = "s68"


class Gen:
    def __init__(self, prof=False, st_flags="sc1", ld_flags="sc1", wflags="nt", lds=LDS_BYTES, timeout=1 << 15, local_st=None, sleep=0, ipf=0):
        self.a = Asm()
        self.prof = prof
        self.st = st_flags
        self.ld = ld_flags
        self.wf = wflags
        self.lds = lds
        self.timeout = timeout
        self.uid = 0
        self.nstamp = 0
        self.local_st = st_flags if local_st is None else local_st
        self.sleep = sleep
        self.ipf = ipf

    def lbl(self, base):
        self.uid += 1
        return f"L_{base}_{self.uid}"

    def stamp(self, idx):
        if self.prof:
            r = 80 + 2 * idx
            self.a(f"s_memrealtime s[{r}:{r+1}]")

    def srd(self, base, ptr, size):
        a = self.a
        a(f"s_mov_b32 s{base}, s{ptr}")
        a(f"s_mov_b32 s{base+1}, s{ptr+1}")
        a(f"s_mov_b32 s{base+2}, {hex(size)}")
        a(f"s_mov_b32 s{base+3}, 0x20000")

    def rb(self, dst, src, tmp=None):
        a = self.a
        t = tmp or dst
        a(f"v_cvt_pk_bf16_f32 {t}, {src}, {src}")
        a(f"v_and_b32 {dst}, 0xffff0000, {t}")

    def swap32(self, x, y):
        self.a(f"v_permlane32_swap_b32 {x}, {y}")

    def swap16(self, x, y):
        self.a(f"v_permlane16_swap_b32 {x}, {y}")

    def tr4(self, c):
        a = self.a
        self.swap32(c[0], c[2])
        self.swap32(c[1], c[3])
        a(f"v_add_f32 {c[0]}, {c[0]}, {c[2]}")
        a(f"v_add_f32 {c[1]}, {c[1]}, {c[3]}")
        self.swap16(c[0], c[1])
        a(f"v_add_f32 {c[0]}, {c[0]}, {c[1]}")

    def dpp(self, op, d, s0, s1, ctl):
        self.a(f"{op}_dpp {d}, {s0}, {s1} {ctl} row_mask:0xf bank_mask:0xf")

    def ror_red(self, op, v, amts):
        for k in amts:
            self.dpp(op, v, v, v, f"row_ror:{k}")

    def xrow_red(self, op, v, tmp):
        a = self.a
        a(f"v_mov_b32 {tmp}, {v}")
        self.swap16(v, tmp)
        a(f"{op} {v}, {v}, {tmp}")
        a(f"v_mov_b32 {tmp}, {v}")
        self.swap32(v, tmp)
        a(f"{op} {v}, {v}, {tmp}")

    def allred(self, op, v, tmp):
        self.ror_red(op, v, (8, 4, 2, 1))
        self.xrow_red(op, v, tmp)

    def check(self, quads, t0, t1, first=True):
        a = self.a
        for b in quads:
            a(f"v_perm_b32 {t0}, v{b+1}, v{b}, {S_SELX}")
            a(f"v_perm_b32 {t1}, v{b+3}, v{b+2}, {S_SELY}")
            a(f"v_or_b32 {t0}, {t0}, {t1}")
            if first:
                a(f"v_cmp_ne_u32 s[70:71], {S_T}, {t0}")
                first = False
            else:
                a(f"v_cmp_ne_u32 vcc, {S_T}, {t0}")
                a("s_or_b64 s[70:71], s[70:71], vcc")

    def strip(self, quads):
        for b in quads:
            for k in range(4):
                self.a(f"v_and_b32 v{b+k}, 0xffffff00, v{b+k}")

    def tagit(self, dstb, srcs):
        for k in range(4):
            self.a(f"v_and_or_b32 v{dstb+k}, {srcs[k]}, v3, {S_TB[k]}")

    def poll(self, name, loads, quads, t0, t1):
        a = self.a
        top = self.lbl(name)
        done = self.lbl(name + "_ok")
        a(f"s_mov_b32 {S_CNT}, 0")
        a.label(top)
        for ld in loads:
            a(ld)
        a("s_waitcnt vmcnt(0)")
        self.check(quads, t0, t1)
        a("s_cmp_eq_u64 s[70:71], 0")
        a(f"s_cbranch_scc1 {done}")
        if self.sleep:
            a(f"s_sleep {self.sleep}")
        a(f"s_add_u32 {S_CNT}, {S_CNT}, 1")
        a(f"s_cmp_lt_u32 {S_CNT}, {self.timeout}")
        a(f"s_cbranch_scc1 {top}")
        a("s_branch L_end")
        a.label(done)
        self.strip(quads)

    def gld(self, dst, vaddr, soff="0", off=0):
        o = f" offset:{off}" if off else ""
        return f"buffer_load_dwordx4 v[{dst}:{dst+3}], {vaddr}, {SRD_WS}, {soff} offen{o} {self.ld}"

    def gst(self, src, vaddr, flags=None):
        fl = self.st if flags is None else flags
        self.a(f"buffer_store_dwordx4 v[{src}:{src+3}], {vaddr}, {SRD_WS}, 0 offen {fl}")

    def wld(self, dst, vaddr, srd, soff_imm, sreg="s72"):
        a = self.a
        if soff_imm < 4096:
            o = f" offset:{soff_imm}" if soff_imm else ""
            a(f"buffer_load_dwordx4 v[{dst}:{dst+3}], {vaddr}, {srd}, 0 offen{o} {self.wf}")
        else:
            a(f"s_mov_b32 {sreg}, {hex(soff_imm)}")
            a(f"buffer_load_dwordx4 v[{dst}:{dst+3}], {vaddr}, {srd}, {sreg} offen {self.wf}")

    def delta_mfma(self, acc, hv, t, bregs, aw, first):
        a = self.a
        for r in range(4):
            self.dpp("v_and_b32", f"v{aw+r}", hv, f"v{4+r}", f"row_newbcast:{t}")
        c = "0" if first else f"v[{acc}:{acc+3}]"
        a(f"v_mfma_f32_16x16x32_bf16 v[{acc}:{acc+3}], v[{aw}:{aw+3}], v[{bregs}:{bregs+3}], {c}")

    def exec_lo32(self):
        self.a("s_mov_b32 exec_hi, 0")

    def exec_all(self):
        self.a("s_mov_b64 exec, -1")

    def silu_pack(self, v, t0, t1):
        a = self.a
        a(f"v_lshlrev_b32 {v}, 16, {v}")
        a(f"v_mul_f32 {t0}, 0xbfb8aa3b, {v}")
        a(f"v_exp_f32 {t0}, {t0}")
        a(f"v_add_f32 {t0}, 1.0, {t0}")
        a(f"v_rcp_f32 {t1}, {t0}")
        a(f"v_mul_f32 {t0}, {v}, {t1}")
        a(f"v_cvt_pk_bf16_f32 {v}, {t0}, {t0}")

    def div(self, q, num, den, r, e):
        a = self.a
        a(f"v_rcp_f32 {r}, {den}")
        a(f"v_mul_f32 {q}, {num}, {r}")
        a(f"v_fma_f32 {e}, -{q}, {den}, {num}")
        a(f"v_fma_f32 {q}, {e}, {r}, {q}")

    def ln_stats(self, x8, mean_bf, den, t0, t1, t2):
        a = self.a
        a(f"v_add_f32 {t0}, {x8[0]}, {x8[1]}")
        a(f"v_add_f32 {t1}, {x8[2]}, {x8[3]}")
        a(f"v_add_f32 {t2}, {x8[4]}, {x8[5]}")
        a(f"v_add_f32 {t0}, {t0}, {t1}")
        a(f"v_add_f32 {t1}, {x8[6]}, {x8[7]}")
        a(f"v_add_f32 {t0}, {t0}, {t2}")
        a(f"v_add_f32 {t0}, {t0}, {t1}")
        self.allred("v_add_f32", t0, t1)
        a(f"v_mul_f32 {t0}, 0x3b000000, {t0}")
        for k in range(8):
            a(f"v_sub_f32 {x8[k]}, {x8[k]}, {t0}")
        a(f"v_mul_f32 {t1}, {x8[0]}, {x8[0]}")
        a(f"v_mul_f32 {t2}, {x8[1]}, {x8[1]}")
        for k in range(2, 8, 2):
            a(f"v_fmac_f32 {t1}, {x8[k]}, {x8[k]}")
            a(f"v_fmac_f32 {t2}, {x8[k+1]}, {x8[k+1]}")
        a(f"v_add_f32 {t1}, {t1}, {t2}")
        self.rb(mean_bf, t0)
        self.allred("v_add_f32", t1, t2)
        a(f"v_mul_f32 {t1}, 0x3b000000, {t1}")
        self.rb(t1, t1)
        a(f"v_add_f32 {t1}, {hex(EPS)}, {t1}")
        self.rb(t1, t1)
        a(f"v_sqrt_f32 {t1}, {t1}")
        self.rb(den, t1)

    def ln_apply(self, out, x, mean_bf, den, t0, t1, t2):
        a = self.a
        a(f"v_sub_f32 {t0}, {x}, {mean_bf}")
        self.rb(t0, t0)
        self.div(out, t0, den, t1, t2)
        self.rb(out, out)

    def modulate_pack(self, out, ln, sc, sh, t0):
        a = self.a
        a(f"v_add_f32 {t0}, 1.0, {sc}")
        self.rb(t0, t0)
        a(f"v_mul_f32 {t0}, {ln}, {t0}")
        self.rb(t0, t0)
        a(f"v_add_f32 {t0}, {t0}, {sh}")
        a(f"v_cvt_pk_bf16_f32 {out}, {t0}, {t0}")

    def red_write(self, acc, vaddr, off=0):
        a = self.a
        self.exec_lo32()
        o = f" offset:{off}" if off else ""
        a(f"ds_write_b128 {vaddr}, v[{acc}:{acc+3}]{o}")
        self.exec_all()

    def red_sum8(self, base, vaddr, stride):
        a = self.a
        for k in range(8):
            a(f"ds_read_b128 v[{base+4*k}:{base+4*k+3}], {vaddr} offset:{k*stride}")
        for k in range(1, 8):
            a(f"s_waitcnt lgkmcnt({7-k})")
            for r in range(4):
                a(f"v_add_f32 v{base+r}, v{base+r}, v{base+4*k+r}")

    def prologue(self):
        a = self.a
        a("s_cmp_ge_u32 s2, 256")
        a("s_cbranch_scc1 L_end")
        if self.prof:
            for k in range(80, 98):
                a(f"s_mov_b32 s{k}, 0")
        self.stamp(0)
        a("s_load_dwordx16 s[16:31], s[0:1], 0")
        a("s_load_dwordx8 s[32:39], s[0:1], 64")
        a("s_load_dwordx4 s[40:43], s[0:1], 96")
        a("v_lshrrev_b32 v10, 6, v0")
        a("v_and_b32 v0, 63, v0")
        a("s_and_b32 s3, s2, 7")
        a("s_lshr_b32 s4, s2, 3")
        a("v_readfirstlane_b32 s5, v10")
        a("v_and_b32 v1, 15, v0")
        a("v_lshrrev_b32 v2, 4, v0")
        a("v_mov_b32 v3, 0xffffff00")
        a("v_and_b32 v10, 1, v1")
        a("v_lshlrev_b32 v10, 4, v10")
        a("v_mov_b32 v11, 0xffff")
        a("v_lshlrev_b32 v10, v10, v11")
        a("v_lshrrev_b32 v11, 1, v1")
        for r in range(4):
            a(f"v_cmp_eq_u32 vcc, {r}, v11")
            a(f"v_cndmask_b32 v{4+r}, 0, v10, vcc")
        a("v_and_b32 v11, 1, v11")
        a("v_cmp_eq_u32 vcc, 0, v11")
        a("v_cndmask_b32 v8, 0, v10, vcc")
        a("v_cndmask_b32 v9, v10, 0, vcc")
        a(f"s_mov_b32 {S_SELX}, 0x0c0c0400")
        a(f"s_mov_b32 {S_SELY}, 0x04000c0c")
        a("s_waitcnt lgkmcnt(0)")
        self.srd(44, P_WS, WS_SIZE)
        a(f"s_load_dword {S_EPOCH}, s[{P_WS}:{P_WS+1}], 0")
        a("s_cmp_lt_u32 s4, 16")
        a("s_cbranch_scc1 L_X")

    def make_tag(self):
        a = self.a
        a("s_waitcnt lgkmcnt(0)")
        a(f"s_add_u32 s69, {S_EPOCH}, 1")
        a(f"s_mul_i32 {S_T}, s69, 0x9E3779B1")
        a(f"s_xor_b32 {S_T}, {S_T}, 0x5BD1E995")
        a(f"s_and_b32 {S_TB[0]}, {S_T}, 0xff")
        a(f"s_bfe_u32 {S_TB[1]}, {S_T}, 0x80008")
        a(f"s_bfe_u32 {S_TB[2]}, {S_T}, 0x80010")
        a(f"s_lshr_b32 {S_TB[3]}, {S_T}, 24")

    def role_Y(self):
        a = self.a
        wf = self.wf
        a.label("L_Y")
        a("s_sub_u32 s6, s4, 16")
        self.srd(48, P_WMOD, 3145728)
        self.srd(52, P_WQ, 4194304)
        self.srd(56, P_X, 1024)
        a("v_lshlrev_b32 v10, 4, v1")
        LnoM = self.lbl("noM")
        a("s_cmp_lg_u32 s5, 0")
        a(f"s_cbranch_scc1 {LnoM}")
        self.srd(72 + 4, P_C, 1024)
        a("v_and_b32 v11, 7, v1")
        a("v_lshlrev_b32 v11, 2, v11")
        a("v_add_u32 v11, v11, v2")
        a("s_lshl_b32 s7, s6, 5")
        a("v_add_u32 v11, s7, v11")
        a("v_lshlrev_b32 v11, 1, v11")
        a("buffer_load_ushort v20, v11, s[76:79], 0 offen")
        a("v_mul_u32_u24 v11, 6144, v2")
        a("v_add_u32 v11, v11, v10")
        a("s_mul_i32 s7, s6, 196608")
        a("s_lshl_b32 s8, s3, 8")
        a("s_add_u32 s7, s7, s8")
        a("v_add_u32 v11, s7, v11")
        for t in range(8):
            self.wld(64 + 4 * t, "v11", "s[48:51]", t * 24576)
        a.label(LnoM)
        a("v_lshlrev_b32 v12, 4, v0")
        a("buffer_load_dwordx4 v[48:51], v12, s[56:59], 0 offen")
        a("s_lshr_b32 s8, s6, 2")
        a("s_and_b32 s9, s6, 3")
        a("s_lshl_b32 s10, s8, 7")
        a("s_lshl_b32 s11, s5, 4")
        a("s_add_u32 s10, s10, s11")
        a("v_and_b32 v12, 3, v1")
        a("v_lshlrev_b32 v12, 2, v12")
        a("v_add_u32 v12, v12, v2")
        a("v_add_u32 v12, s10, v12")
        a("v_lshlrev_b32 v12, 1, v12")
        a("buffer_load_ushort v21, v12, s[56:59], 0 offen")
        a("v_lshlrev_b32 v12, 13, v2")
        a("v_add_u32 v12, v12, v10")
        a("s_lshl_b32 s11, s10, 13")
        a("s_lshl_b32 s12, s3, 10")
        a("s_lshl_b32 s13, s9, 8")
        a("s_add_u32 s11, s11, s12")
        a("s_add_u32 s11, s11, s13")
        a("v_add_u32 v12, s11, v12")
        for t in range(4):
            self.wld(32 + 4 * t, "v12", "s[52:55]", t * 32768)
        self.make_tag()
        LnoM2 = self.lbl("noM2")
        a("s_cmp_lg_u32 s5, 0")
        a(f"s_cbranch_scc1 {LnoM2}")
        a("s_waitcnt vmcnt(14)")
        self.silu_pack("v20", "v22", "v23")
        a("s_waitcnt vmcnt(6)")
        for t in range(8):
            self.delta_mfma(60, "v20", t, 64 + 4 * t, 24 + 4 * (t & 1), t == 0)
        a("v_lshlrev_b32 v11, 1, v1")
        a("v_add_u32 v11, v11, v2")
        a("v_lshlrev_b32 v11, 4, v11")
        a("s_lshl_b32 s7, s3, 4")
        a("s_add_u32 s7, s7, s6")
        a("s_lshl_b32 s7, s7, 9")
        a(f"s_add_u32 s7, s7, {hex(E1)}")
        a("v_add_u32 v11, s7, v11")
        self.tagit(16, ["v60", "v61", "v62", "v63"])
        self.exec_lo32()
        self.gst(16, "v11")
        self.exec_all()
        self.stamp(1)
        a.label(LnoM2)
        a("s_waitcnt vmcnt(4)")
        a("s_waitcnt vmcnt(4)")
        xs = [f"v{52+k}" for k in range(8)]
        for k in range(4):
            a(f"v_lshlrev_b32 v{52+2*k}, 16, v{48+k}")
            a(f"v_and_b32 v{53+2*k}, 0xffff0000, v{48+k}")
        self.ln_stats(xs, "v22", "v23", "v24", "v25", "v26")
        a("v_lshlrev_b32 v21, 16, v21")
        self.ln_apply("v21", "v21", "v22", "v23", "v24", "v25", "v26")
        a("v_lshrrev_b32 v11, 2, v0")
        a("v_lshlrev_b32 v11, 9, v11")
        a("v_and_b32 v12, 3, v0")
        a("v_lshlrev_b32 v12, 4, v12")
        a("v_add_u32 v11, v11, v12")
        a("s_lshl_b32 s7, s8, 13")
        a("s_lshl_b32 s12, s5, 6")
        a("s_add_u32 s7, s7, s12")
        a(f"s_add_u32 s7, s7, {hex(E1)}")
        a("v_add_u32 v11, s7, v11")
        a("s_mov_b32 s73, 0x8000")
        self.poll("e1", [self.gld(52, "v11"), self.gld(56, "v11", "s73")], [52, 56], "v24", "v25")
        self.stamp(2)
        for b in (52, 56):
            self.tr4([f"v{b+k}" for k in range(4)])
            self.ror_red("v_add_f32", f"v{b}", (8, 4))
        self.rb("v52", "v52")
        self.rb("v56", "v56")
        self.modulate_pack("v20", "v21", "v56", "v52", "v24")
        for t in range(4):
            self.delta_mfma(60, "v20", t, 32 + 4 * t, 24 + 4 * (t & 1), t == 0)
        a("v_lshlrev_b32 v11, 1, v1")
        a("v_add_u32 v11, v11, v2")
        a("v_lshlrev_b32 v11, 4, v11")
        a("s_lshl_b32 s7, s5, 9")
        a("v_add_u32 v13, s7, v11")
        self.red_write(60, "v13")
        a("s_waitcnt lgkmcnt(0)")
        a("s_barrier")
        Lq = self.lbl("qpub")
        a("s_cmp_lg_u32 s5, 0")
        a(f"s_cbranch_scc1 {Lq}")
        a("v_lshlrev_b32 v11, 4, v0")
        self.red_sum8(32, "v11", 512)
        a("s_lshl_b32 s7, s3, 2")
        a("s_add_u32 s7, s7, s9")
        a("s_lshl_b32 s7, s7, 2")
        a("s_add_u32 s7, s7, s8")
        a("s_lshl_b32 s7, s7, 9")
        a(f"s_add_u32 s7, s7, {hex(E2)}")
        a("v_add_u32 v11, s7, v11")
        self.tagit(16, ["v32", "v33", "v34", "v35"])
        self.exec_lo32()
        self.gst(16, "v11", self.local_st)
        self.exec_all()
        a.label(Lq)
        self.stamp(3)
        a("s_cmp_ge_u32 s6, 8")
        a("s_cbranch_scc1 L_M2")
        self.role_O()
        self.role_M2()

    def role_O(self):
        a = self.a
        a.label("L_O")
        a("s_and_b32 s8, s6, 3")
        a("s_lshr_b32 s9, s6, 2")
        self.srd(48, P_WO, 4194304)
        a("v_lshlrev_b32 v12, 10, v2")
        a("v_add_u32 v12, v12, v10")
        a("s_lshl_b32 s10, s3, 9")
        a("s_lshl_b32 s11, s9, 8")
        a("s_add_u32 s10, s10, s11")
        a("s_lshl_b32 s11, s5, 5")
        a("s_add_u32 s10, s10, s11")
        a("s_lshl_b32 s10, s10, 10")
        a("s_lshl_b32 s11, s8, 8")
        a("s_add_u32 s10, s10, s11")
        a("v_add_u32 v12, s10, v12")
        for t in range(8):
            self.wld(64 + 4 * t, "v12", "s[48:51]", t * 4096)
        a("s_lshl_b32 s10, s9, 1")
        a("s_lshr_b32 s11, s5, 2")
        a("s_add_u32 s10, s10, s11")
        a("s_lshl_b32 s11, s3, 2")
        a("s_add_u32 s10, s10, s11")
        a("v_lshrrev_b32 v11, 2, v0")
        a("v_lshlrev_b32 v13, 9, v11")
        a("v_and_b32 v14, 3, v0")
        a("v_lshlrev_b32 v14, 4, v14")
        a("v_add_u32 v13, v13, v14")
        a("s_lshl_b32 s11, s10, 13")
        a("s_and_b32 s12, s5, 3")
        a("s_lshl_b32 s12, s12, 7")
        a("s_add_u32 s11, s11, s12")
        a(f"s_add_u32 s11, s11, {hex(E3O)}")
        a("v_add_u32 v13, s11, v13")
        a("v_lshlrev_b32 v14, 4, v11")
        a("s_lshl_b32 s11, s10, 8")
        a(f"s_add_u32 s11, s11, {hex(E3ML)}")
        a("v_add_u32 v14, s11, v14")
        self.poll("e3", [self.gld(32, "v13"), self.gld(36, "v13", off=64), self.gld(40, "v14")], [32, 36, 40], "v24", "v25")
        self.stamp(4)
        a("v_mov_b32 v22, v40")
        self.ror_red("v_max_f32", "v22", (8, 4))
        self.xrow_red("v_max_f32", "v22", "v23")
        a("v_sub_f32 v22, v40, v22")
        a(f"v_mul_f32 v22, {hex(LOG2E)}, v22")
        a("v_exp_f32 v22, v22")
        a("v_mul_f32 v23, v22, v41")
        for k in range(8):
            a(f"v_mul_f32 v{32+k}, v{32+k}, v22")
        self.ror_red("v_add_f32", "v23", (8, 4))
        self.xrow_red("v_add_f32", "v23", "v24")
        for b in (32, 36):
            self.tr4([f"v{b+k}" for k in range(4)])
            self.ror_red("v_add_f32", f"v{b}", (8, 4))
        for b, o in ((32, "v20"), (36, "v21")):
            self.div("v26", f"v{b}", "v23", "v24", "v25")
            a(f"v_cvt_pk_bf16_f32 {o}, v26, v26")
        for t in range(8):
            self.delta_mfma(60, "v20" if t < 4 else "v21", t & 3, 64 + 4 * t, 24 + 4 * (t & 1), t == 0)
        a("v_lshlrev_b32 v11, 1, v1")
        a("v_add_u32 v11, v11, v2")
        a("v_lshlrev_b32 v11, 4, v11")
        a("s_lshl_b32 s7, s5, 9")
        a("v_add_u32 v13, s7, v11")
        self.red_write(60, "v13")
        a("s_waitcnt lgkmcnt(0)")
        a("s_barrier")
        a("s_cmp_lg_u32 s5, 0")
        a("s_cbranch_scc1 L_fin")
        a("v_lshlrev_b32 v11, 4, v0")
        self.red_sum8(32, "v11", 512)
        a("s_lshl_b32 s7, s3, 1")
        a("s_add_u32 s7, s7, s9")
        a("s_lshl_b32 s7, s7, 11")
        a("s_lshl_b32 s10, s8, 9")
        a("s_add_u32 s7, s7, s10")
        a(f"s_add_u32 s7, s7, {hex(E4)}")
        a("v_add_u32 v11, s7, v11")
        self.tagit(16, ["v32", "v33", "v34", "v35"])
        self.exec_lo32()
        self.gst(16, "v11")
        self.exec_all()
        self.stamp(5)
        a("s_branch L_fin")

    def role_M2(self):
        a = self.a
        a.label("L_M2")
        a("s_sub_u32 s7, s6, 8")
        a("s_and_b32 s8, s7, 3")
        a("s_lshr_b32 s9, s7, 2")
        a("s_lshl_b32 s10, s3, 1")
        a("s_add_u32 s9, s9, s10")
        self.srd(76, P_C, 1024)
        a("s_lshl_b32 s10, s8, 7")
        a("s_lshl_b32 s11, s5, 4")
        a("s_add_u32 s10, s10, s11")
        a("v_and_b32 v12, 3, v1")
        a("v_lshlrev_b32 v12, 2, v12")
        a("v_add_u32 v12, v12, v2")
        a("v_add_u32 v12, s10, v12")
        a("v_lshlrev_b32 v12, 1, v12")
        a("buffer_load_ushort v20, v12, s[76:79], 0 offen")
        a("v_mul_u32_u24 v12, 6144, v2")
        a("v_add_u32 v12, v12, v10")
        a("s_mul_i32 s11, s10, 6144")
        a("s_lshl_b32 s12, s9, 8")
        a("s_add_u32 s11, s11, s12")
        a("s_add_u32 s11, s11, 2048")
        a("v_add_u32 v12, s11, v12")
        for t in range(4):
            self.wld(32 + 4 * t, "v12", "s[48:51]", t * 24576)
        a("s_waitcnt vmcnt(4)")
        self.silu_pack("v20", "v22", "v23")
        a("s_waitcnt vmcnt(0)")
        for t in range(4):
            self.delta_mfma(60, "v20", t, 32 + 4 * t, 24 + 4 * (t & 1), t == 0)
        a("v_lshlrev_b32 v11, 1, v1")
        a("v_add_u32 v11, v11, v2")
        a("v_lshlrev_b32 v11, 4, v11")
        a("s_lshl_b32 s7, s5, 9")
        a("v_add_u32 v13, s7, v11")
        self.red_write(60, "v13", off=4096)
        a("s_waitcnt lgkmcnt(0)")
        a("s_barrier")
        a("s_cmp_lg_u32 s5, 0")
        a("s_cbranch_scc1 L_fin")
        a("v_lshlrev_b32 v11, 4, v0")
        a("v_add_u32 v13, 4096, v11")
        self.red_sum8(32, "v13", 512)
        a("s_lshl_b32 s7, s9, 2")
        a("s_add_u32 s7, s7, s8")
        a("s_lshl_b32 s7, s7, 9")
        a(f"s_add_u32 s7, s7, {hex(M2B)}")
        a("v_add_u32 v11, s7, v11")
        self.tagit(16, ["v32", "v33", "v34", "v35"])
        self.exec_lo32()
        self.gst(16, "v11")
        self.exec_all()
        self.stamp(5)
        a("s_branch L_fin")

    def role_X(self):
        a = self.a
        a.label("L_X")
        a("s_mov_b32 s6, s4")
        self.srd(48, P_K, 67108864)
        self.srd(52, P_V, 67108864)
        a("s_lshl_b32 s7, s6, 8")
        a("s_lshl_b32 s8, s5, 5")
        a("s_add_u32 s7, s7, s8")
        a("s_add_u32 s7, s7, 28672")
        a("s_lshl_b32 s7, s7, 8")
        a("s_lshl_b32 s8, s3, 23")
        a("s_add_u32 s7, s7, s8")
        a("v_lshlrev_b32 v10, 8, v1")
        a("v_lshlrev_b32 v11, 4, v2")
        a("v_add_u32 v10, v10, v11")
        a("v_add_u32 v10, s7, v10")
        a("v_lshlrev_b32 v11, 10, v2")
        a("v_lshlrev_b32 v12, 4, v1")
        a("v_add_u32 v11, v11, v12")
        a("v_add_u32 v11, s7, v11")
        a("s_mov_b32 s73, 4096")
        wf = self.wf
        for u in range(2):
            for m in range(4):
                so = "0" if u == 0 else "s73"
                o = f" offset:{64*m}" if m else ""
                a(f"buffer_load_dwordx4 v[{32+16*u+4*m}:{35+16*u+4*m}], v10, s[48:51], {so} offen{o} {wf}")
        for u in range(2):
            for r in range(4):
                so = "0" if u == 0 else "s73"
                o = f" offset:{256*r}" if r else ""
                a(f"buffer_load_dwordx4 v[{64+16*u+4*r}:{67+16*u+4*r}], v11, s[52:55], {so} offen{o} {wf}")
        self.make_tag()
        a("s_lshr_b32 s8, s5, 1")
        a("s_and_b32 s9, s5, 1")
        a("s_lshl_b32 s10, s3, 2")
        a("s_add_u32 s10, s10, s8")
        a("s_lshl_b32 s10, s10, 11")
        a("s_lshl_b32 s11, s9, 8")
        a("s_add_u32 s10, s10, s11")
        a(f"s_add_u32 s10, s10, {hex(E2)}")
        a("v_lshlrev_b32 v12, 9, v2")
        a("v_lshlrev_b32 v13, 4, v1")
        a("v_add_u32 v12, v12, v13")
        a("v_add_u32 v12, s10, v12")
        self.poll("e2", [self.gld(96, "v12")], [96], "v24", "v25")
        self.stamp(2)
        self.tr4(["v96", "v97", "v98", "v99"])
        a("v_cvt_pk_bf16_f32 v96, v96, v96")
        a("s_lshl_b32 s10, s8, 8")
        a("s_lshl_b32 s11, s9, 7")
        a("s_add_u32 s10, s10, s11")
        a(f"s_add_u32 s10, s10, {L_QS}")
        a("v_lshlrev_b32 v12, 3, v1")
        a("v_lshlrev_b32 v13, 1, v2")
        a("v_add_u32 v12, v12, v13")
        a("v_add_u32 v12, s10, v12")
        a("ds_write_b16 v12, v96")
        a("s_waitcnt lgkmcnt(0)")
        a("s_barrier")
        a("v_lshrrev_b32 v12, 2, v1")
        a("v_lshlrev_b32 v12, 8, v12")
        a("v_lshlrev_b32 v13, 4, v2")
        a("v_add_u32 v12, v12, v13")
        for m in range(4):
            a(f"ds_read_b128 v[{104+4*m}:{107+4*m}], v12 offset:{L_QS + 64*m}")
        a("s_waitcnt lgkmcnt(0)")
        for u in range(2):
            for m in range(4):
                c = "0" if m == 0 else f"v[{96+4*u}:{99+4*u}]"
                a(f"v_mfma_f32_16x16x32_bf16 v[{96+4*u}:{99+4*u}], v[{32+16*u+4*m}:{35+16*u+4*m}], v[{104+4*m}:{107+4*m}], {c}")
        for f in range(9):
            a(f"v_mov_b32 v{30+4*f}, 0")
            a(f"v_mov_b32 v{31+4*f}, 0")
        S = [f"v{96+k}" for k in range(8)]
        for s in S:
            self.rb(s, s)
        for s in S:
            a(f"v_mul_f32 {s}, {hex(SCALE)}, {s}")
        for s in S:
            self.rb(s, s)
        a("v_max3_f32 v14, v96, v97, v98")
        a("v_max3_f32 v15, v99, v100, v101")
        a("v_max3_f32 v14, v14, v102, v103")
        a("v_max_f32 v14, v14, v15")
        self.xrow_red("v_max_f32", "v14", "v15")
        for s in S:
            a(f"v_sub_f32 {s}, {s}, v14")
        for s in S:
            a(f"v_mul_f32 {s}, {hex(LOG2E)}, {s}")
        for s in S:
            a(f"v_exp_f32 {s}, {s}")
        a("v_add_f32 v15, v96, v97")
        a("v_add_f32 v16, v98, v99")
        a("v_add_f32 v17, v100, v101")
        a("v_add_f32 v18, v102, v103")
        a("v_add_f32 v15, v15, v16")
        a("v_add_f32 v17, v17, v18")
        a("v_add_f32 v15, v15, v17")
        for f in range(8):
            a(f"v_cvt_pk_bf16_f32 v{96+f}, v{96+f}, v{96+f}")
        for f in range(8):
            a(f"v_and_b32 v{32+4*f}, v{96+f}, v8")
            a(f"v_and_b32 v{33+4*f}, v{96+f}, v9")
        for f in range(8):
            vb = 64 + 4 * f
            c0 = "0" if f == 0 else "v[104:107]"
            c1 = "0" if f == 0 else "v[108:111]"
            a(f"v_mfma_f32_16x16x32_bf16 v[104:107], v[{32+4*f}:{35+4*f}], v[{vb}:{vb+3}], {c0}")
            a(f"v_mfma_f32_16x16x32_bf16 v[108:111], v[{30+4*f}:{33+4*f}], v[{vb}:{vb+3}], {c1}")
        self.xrow_red("v_add_f32", "v15", "v16")
        a("v_lshrrev_b32 v12, 2, v1")
        a("v_lshlrev_b32 v12, 5, v12")
        a("s_lshl_b32 s10, s5, 2")
        a("v_add_u32 v12, s10, v12")
        a(f"ds_write_b32 v12, v14 offset:{L_MLM}")
        a(f"ds_write_b32 v12, v15 offset:{L_MLL}")
        a("v_lshlrev_b32 v12, 9, v2")
        a("v_lshlrev_b32 v13, 5, v1")
        a("v_add_u32 v12, v12, v13")
        a("s_lshl_b32 s10, s5, 11")
        a("v_add_u32 v12, s10, v12")
        a("ds_write_b128 v12, v[104:107]")
        a("ds_write_b128 v12, v[108:111] offset:16")
        a("s_waitcnt lgkmcnt(0)")
        a("s_barrier")
        Lr = self.lbl("ared")
        a("s_cmp_ge_u32 s5, 2")
        a(f"s_cbranch_scc1 {Lr}")
        a("s_lshl_b32 s10, s5, 6")
        a("v_add_u32 v12, s10, v0")
        a("v_lshrrev_b32 v13, 5, v12")
        a("v_lshlrev_b32 v14, 5, v13")
        a(f"ds_read_b128 v[16:19], v14 offset:{L_MLM}")
        a(f"ds_read_b128 v[20:23], v14 offset:{L_MLM+16}")
        a(f"ds_read_b128 v[24:27], v14 offset:{L_MLL}")
        a(f"ds_read_b128 v[28:31], v14 offset:{L_MLL+16}")
        a("v_lshlrev_b32 v14, 4, v12")
        for k in range(8):
            a(f"ds_read_b128 v[{32+4*k}:{35+4*k}], v14 offset:{k*2048}")
        a("s_waitcnt lgkmcnt(8)")
        a("v_max3_f32 v64, v16, v17, v18")
        a("v_max3_f32 v65, v19, v20, v21")
        a("v_max3_f32 v64, v64, v22, v23")
        a("v_max_f32 v64, v64, v65")
        for k in range(8):
            a(f"v_sub_f32 v{16+k}, v{16+k}, v64")
        for k in range(8):
            a(f"v_mul_f32 v{16+k}, {hex(LOG2E)}, v{16+k}")
        for k in range(8):
            a(f"v_exp_f32 v{16+k}, v{16+k}")
        a("v_mul_f32 v65, v16, v24")
        for k in range(1, 8):
            a(f"v_fmac_f32 v65, v{16+k}, v{24+k}")
        a("s_waitcnt lgkmcnt(0)")
        for r in range(4):
            a(f"v_mul_f32 v{68+r}, v16, v{32+r}")
        for k in range(1, 8):
            for r in range(4):
                a(f"v_fmac_f32 v{68+r}, v{16+k}, v{32+4*k+r}")
        a("s_lshl_b32 s10, s3, 2")
        a("v_add_u32 v13, s10, v13")
        a("v_lshlrev_b32 v13, 4, v13")
        a("v_add_u32 v13, s6, v13")
        a("v_lshlrev_b32 v14, 9, v13")
        a("v_and_b32 v15, 31, v12")
        a("v_lshlrev_b32 v66, 4, v15")
        a("v_add_u32 v14, v14, v66")
        a(f"v_add_u32 v14, {hex(E3O)}, v14")
        self.tagit(72, ["v68", "v69", "v70", "v71"])
        self.gst(72, "v14", self.local_st)
        a("v_lshlrev_b32 v13, 4, v13")
        a(f"v_add_u32 v13, {hex(E3ML)}, v13")
        a("v_mov_b32 v66, 0")
        self.tagit(76, ["v64", "v65", "v66", "v66"])
        a("v_cmp_eq_u32 vcc, 0, v15")
        a("s_and_saveexec_b64 s[74:75], vcc")
        self.gst(76, "v13", self.local_st)
        a("s_mov_b64 exec, s[74:75]")
        a.label(Lr)
        self.stamp(3)
        a("s_cmp_eq_u32 s3, 7")
        a("s_cbranch_scc1 L_Z")
        self.role_F()
        self.role_Z()

    def role_F(self):
        a = self.a
        a.label("L_F")
        a("s_lshr_b32 s8, s6, 3")
        a("s_lshl_b32 s9, s3, 1")
        a("s_add_u32 s8, s8, s9")
        a("s_and_b32 s9, s6, 7")
        self.srd(48, P_GATE, 1835008)
        self.srd(52, P_UP, 1835008)
        self.srd(56, P_DOWN, 1835008)
        self.srd(76, P_X, 1024)
        a("v_lshlrev_b32 v10, 4, v1")
        a("v_mul_u32_u24 v12, 3584, v2")
        a("v_add_u32 v12, v12, v10")
        a("s_lshl_b32 s10, s9, 6")
        a("s_lshl_b32 s11, s5, 3")
        a("s_add_u32 s10, s10, s11")
        a("s_mul_i32 s11, s10, 3584")
        a("s_lshl_b32 s12, s8, 8")
        a("s_add_u32 s11, s11, s12")
        a("v_add_u32 v12, s11, v12")
        for t in range(2):
            self.wld(32 + 4 * t, "v12", "s[48:51]", t * 14336)
        for t in range(2):
            self.wld(40 + 4 * t, "v12", "s[52:55]", t * 14336)
        Lnd = self.lbl("nodown")
        a("s_cmp_ge_u32 s5, 4")
        a(f"s_cbranch_scc1 {Lnd}")
        a("v_lshlrev_b32 v12, 10, v2")
        a("v_add_u32 v12, v12, v10")
        a("s_lshl_b32 s11, s8, 7")
        a("s_lshl_b32 s12, s9, 4")
        a("s_add_u32 s11, s11, s12")
        a("s_lshl_b32 s11, s11, 10")
        a("s_lshl_b32 s12, s5, 8")
        a("s_add_u32 s11, s11, s12")
        a("v_add_u32 v12, s11, v12")
        for t in range(4):
            self.wld(48 + 4 * t, "v12", "s[56:59]", t * 4096)
        a.label(Lnd)
        a("s_lshl_b32 s11, s5, 4")
        a("v_add_u32 v13, s11, v1")
        a("v_lshlrev_b32 v14, 2, v13")
        a("v_add_u32 v14, v14, v2")
        a("v_lshlrev_b32 v15, 1, v14")
        a("buffer_load_ushort v21, v15, s[76:79], 0 offen")
        a("v_lshrrev_b32 v15, 5, v13")
        a("v_lshlrev_b32 v15, 2, v15")
        a("v_add_u32 v15, v15, v2")
        a("v_lshlrev_b32 v15, 5, v15")
        a("v_and_b32 v16, 31, v13")
        a("v_add_u32 v15, v15, v16")
        a("v_lshlrev_b32 v15, 4, v15")
        a(f"v_add_u32 v15, {hex(M2B)}, v15")
        a("s_lshl_b32 s11, s9, 4")
        a("s_lshl_b32 s12, s5, 1")
        a("s_add_u32 s11, s11, s12")
        a("v_and_b32 v16, 1, v1")
        a("v_add_u32 v16, s11, v16")
        a("v_lshrrev_b32 v17, 1, v1")
        a("v_and_b32 v17, 1, v17")
        a("v_lshlrev_b32 v17, 2, v17")
        a("v_lshrrev_b32 v18, 5, v16")
        a("v_add3_u32 v17, v17, v18, 4")
        a("v_lshlrev_b32 v17, 2, v17")
        a("v_add_u32 v17, v17, v2")
        a("v_lshlrev_b32 v17, 5, v17")
        a("v_and_b32 v16, 31, v16")
        a("v_add_u32 v17, v17, v16")
        a("v_lshlrev_b32 v17, 4, v17")
        a(f"v_add_u32 v17, {hex(M2B)}, v17")
        self.poll("m2", [self.gld(64, "v15"), self.gld(68, "v17")], [64, 68], "v24", "v25")
        self.tr4(["v64", "v65", "v66", "v67"])
        self.rb("v64", "v64")
        self.tr4(["v68", "v69", "v70", "v71"])
        self.rb("v68", "v68")
        a("v_mov_b32_dpp v69, v68 quad_perm:[2,3,0,1] row_mask:0xf bank_mask:0xf")
        a("v_lshlrev_b32 v15, 11, v2")
        a("v_lshlrev_b32 v16, 4, v13")
        a("v_add_u32 v15, v15, v16")
        a(f"v_add_u32 v15, {hex(E4)}, v15")
        a("s_mov_b32 s73, 0x2000")
        a("s_mov_b32 s74, 0x4000")
        a("s_mov_b32 s75, 0x6000")
        self.poll("e4", [self.gld(72, "v15"), self.gld(76, "v15", "s73"), self.gld(80, "v15", "s74"), self.gld(84, "v15", "s75")],
                  [72, 76, 80, 84], "v24", "v25")
        self.stamp(4)
        for r in range(4):
            a(f"v_add_f32 v{72+r}, v{72+r}, v{76+r}")
            a(f"v_add_f32 v{80+r}, v{80+r}, v{84+r}")
        for r in range(4):
            a(f"v_add_f32 v{72+r}, v{72+r}, v{80+r}")
        self.tr4(["v72", "v73", "v74", "v75"])
        self.rb("v72", "v72")
        a("v_mul_f32 v72, v64, v72")
        self.rb("v72", "v72")
        a("v_lshlrev_b32 v21, 16, v21")
        a("v_add_f32 v72, v21, v72")
        self.rb("v72", "v72")
        a("v_lshlrev_b32 v15, 2, v14")
        a(f"ds_write_b32 v15, v72 offset:{L_X1}")
        a("s_waitcnt lgkmcnt(0)")
        a("s_barrier")
        a("v_lshlrev_b32 v15, 5, v0")
        a(f"ds_read_b128 v[72:75], v15 offset:{L_X1}")
        a(f"ds_read_b128 v[76:79], v15 offset:{L_X1+16}")
        a("v_and_b32 v16, 1, v1")
        a("v_lshlrev_b32 v16, 2, v16")
        a("v_add_u32 v16, v16, v2")
        a("v_add_u32 v16, s10, v16")
        a("v_lshlrev_b32 v16, 2, v16")
        a(f"ds_read_b32 v21, v16 offset:{L_X1}")
        a("s_waitcnt lgkmcnt(0)")
        self.ln_stats([f"v{72+k}" for k in range(8)], "v22", "v23", "v24", "v25", "v26")
        self.ln_apply("v21", "v21", "v22", "v23", "v24", "v25", "v26")
        self.modulate_pack("v20", "v21", "v69", "v68", "v24")
        for t in range(2):
            self.delta_mfma(88, "v20", t, 32 + 4 * t, 24, t == 0)
            c = "0" if t == 0 else "v[92:95]"
            a(f"v_mfma_f32_16x16x32_bf16 v[92:95], v[24:27], v[{40+4*t}:{43+4*t}], {c}")
            if t == 0:
                a("s_nop 1")
        a("v_lshlrev_b32 v11, 1, v1")
        a("v_add_u32 v11, v11, v2")
        a("v_lshlrev_b32 v11, 4, v11")
        a("s_lshl_b32 s7, s5, 10")
        a("v_add_u32 v13, s7, v11")
        self.exec_lo32()
        a("ds_write_b128 v13, v[88:91]")
        a("ds_write_b128 v13, v[92:95] offset:512")
        self.exec_all()
        a("s_waitcnt lgkmcnt(0)")
        a("s_barrier")
        Lp = self.lbl("f1pub")
        a("s_cmp_lg_u32 s5, 0")
        a(f"s_cbranch_scc1 {Lp}")
        a("v_lshlrev_b32 v11, 4, v0")
        self.red_sum8(64, "v11", 1024)
        a("s_lshl_b32 s7, s8, 3")
        a("s_add_u32 s7, s7, s9")
        a("s_lshl_b32 s7, s7, 10")
        a(f"s_add_u32 s7, s7, {hex(F1B)}")
        a("v_add_u32 v11, s7, v11")
        self.tagit(16, ["v64", "v65", "v66", "v67"])
        self.gst(16, "v11", self.local_st)
        a.label(Lp)
        self.stamp(5)
        a("s_cmp_ge_u32 s5, 4")
        a("s_cbranch_scc1 L_fin")
        a("v_lshrrev_b32 v11, 3, v0")
        a("v_lshlrev_b32 v11, 10, v11")
        a("v_lshrrev_b32 v12, 2, v0")
        a("v_and_b32 v12, 1, v12")
        a("v_lshlrev_b32 v12, 9, v12")
        a("v_add_u32 v11, v11, v12")
        a("v_and_b32 v12, 3, v0")
        a("v_lshlrev_b32 v12, 4, v12")
        a("v_add_u32 v11, v11, v12")
        a("s_lshl_b32 s7, s8, 13")
        a("s_lshl_b32 s10, s9, 6")
        a("s_add_u32 s7, s7, s10")
        a(f"s_add_u32 s7, s7, {hex(F1B)}")
        a("v_add_u32 v11, s7, v11")
        self.poll("e4b", [self.gld(64, "v11")], [64], "v24", "v25")
        self.stamp(6)
        self.tr4(["v64", "v65", "v66", "v67"])
        self.ror_red("v_add_f32", "v64", (8,))
        self.rb("v64", "v64")
        a("v_mov_b32_dpp v65, v64 row_ror:4 row_mask:0xf bank_mask:0xf")
        a("v_mul_f32 v64, v64, v65")
        a("v_cvt_pk_bf16_f32 v20, v64, v64")
        for t in range(4):
            self.delta_mfma(88, "v20", t, 48 + 4 * t, 24 + 4 * (t & 1), t == 0)
        a("v_lshlrev_b32 v11, 1, v1")
        a("v_add_u32 v11, v11, v2")
        a("v_lshlrev_b32 v11, 4, v11")
        a("s_lshl_b32 s7, s8, 3")
        a("s_add_u32 s7, s7, s9")
        a("s_lshl_b32 s7, s7, 11")
        a("s_lshl_b32 s10, s5, 9")
        a("s_add_u32 s7, s7, s10")
        a(f"s_add_u32 s7, s7, {hex(F2B)}")
        a("v_add_u32 v11, s7, v11")
        self.tagit(16, ["v88", "v89", "v90", "v91"])
        self.exec_lo32()
        self.gst(16, "v11")
        self.exec_all()
        self.stamp(7)
        a("s_branch L_fin")

    def role_Z(self):
        a = self.a
        a.label("L_Z")
        a("v_lshrrev_b32 v11, 3, v0")
        a("v_and_b32 v12, 7, v0")
        a("s_lshl_b32 s8, s6, 3")
        a("v_add_u32 v13, s8, v12")
        a("v_lshlrev_b32 v13, 4, v13")
        a("s_cmp_eq_u32 s5, 7")
        a("s_cbranch_scc1 L_Z7")
        a("v_lshlrev_b32 v14, 11, v11")
        a("v_add_u32 v14, v14, v13")
        a("s_lshl_b32 s9, s5, 15")
        a(f"s_add_u32 s9, s9, {hex(F2B)}")
        a("v_add_u32 v14, s9, v14")
        a("s_mov_b32 s73, 0x4000")
        self.poll("e5", [self.gld(32, "v14"), self.gld(36, "v14", "s73")], [32, 36], "v24", "v25")
        self.stamp(6)
        for r in range(4):
            a(f"v_add_f32 v{32+r}, v{32+r}, v{36+r}")
        self.tr4(["v32", "v33", "v34", "v35"])
        self.ror_red("v_add_f32", "v32", (8,))
        a("v_lshlrev_b32 v14, 4, v12")
        a("v_lshlrev_b32 v15, 2, v2")
        a("v_add_u32 v14, v14, v15")
        a("s_lshl_b32 s9, s5, 7")
        a("v_add_u32 v14, s9, v14")
        a(f"ds_write_b32 v14, v32 offset:{L_ZP}")
        a("s_waitcnt lgkmcnt(0)")
        a("s_barrier")
        a("s_branch L_fin")
        a.label("L_Z7")
        self.srd(76, P_X, 1024)
        self.srd(48, P_OUT, 1024)
        a("v_lshlrev_b32 v14, 2, v12")
        a("v_add_u32 v14, v14, v2")
        a("s_lshl_b32 s9, s6, 5")
        a("v_add_u32 v14, s9, v14")
        a("v_lshlrev_b32 v15, 1, v14")
        a("buffer_load_ushort v21, v15, s[76:79], 0 offen")
        a("v_add_u32 v16, s8, v12")
        a("v_lshrrev_b32 v17, 5, v16")
        a("v_and_b32 v18, 1, v11")
        a("v_mul_u32_u24 v18, 12, v18")
        a("v_add_u32 v17, v17, v18")
        a("v_lshlrev_b32 v17, 2, v17")
        a("v_add_u32 v17, v17, v2")
        a("v_lshlrev_b32 v17, 5, v17")
        a("v_and_b32 v16, 31, v16")
        a("v_add_u32 v17, v17, v16")
        a("v_lshlrev_b32 v17, 4, v17")
        a(f"v_add_u32 v17, {hex(M2B)}, v17")
        self.poll("zm2", [self.gld(40, "v17")], [40], "v24", "v25")
        self.tr4(["v40", "v41", "v42", "v43"])
        self.rb("v40", "v40")
        a("v_mov_b32_dpp v41, v40 row_ror:8 row_mask:0xf bank_mask:0xf")
        a("v_lshlrev_b32 v16, 11, v11")
        a("v_add_u32 v16, v16, v13")
        a(f"v_add_u32 v16, {hex(E4)}, v16")
        a("s_mov_b32 s73, 0x4000")
        self.poll("ze4", [self.gld(32, "v16"), self.gld(36, "v16", "s73")], [32, 36], "v24", "v25")
        for r in range(4):
            a(f"v_add_f32 v{32+r}, v{32+r}, v{36+r}")
        self.tr4(["v32", "v33", "v34", "v35"])
        self.ror_red("v_add_f32", "v32", (8,))
        self.rb("v32", "v32")
        a("v_mul_f32 v32, v40, v32")
        self.rb("v32", "v32")
        a("v_lshlrev_b32 v21, 16, v21")
        a("v_add_f32 v32, v21, v32")
        self.rb("v32", "v32")
        a("s_barrier")
        a("v_lshlrev_b32 v16, 4, v12")
        a("v_lshlrev_b32 v17, 2, v2")
        a("v_add_u32 v16, v16, v17")
        for k in range(7):
            a(f"ds_read_b32 v{48+k}, v16 offset:{L_ZP + 128*k}")
        a("s_waitcnt lgkmcnt(0)")
        a("v_add_f32 v48, v48, v49")
        a("v_add_f32 v50, v50, v51")
        a("v_add_f32 v52, v52, v53")
        a("v_add_f32 v48, v48, v50")
        a("v_add_f32 v52, v52, v54")
        a("v_add_f32 v48, v48, v52")
        self.rb("v48", "v48")
        a("v_mul_f32 v48, v41, v48")
        self.rb("v48", "v48")
        a("v_add_f32 v48, v32, v48")
        a("v_cvt_pk_bf16_f32 v48, v48, v48")
        a("v_and_b32 v18, 1, v11")
        a("v_cmp_eq_u32 vcc, 0, v18")
        a("s_and_saveexec_b64 s[74:75], vcc")
        a("buffer_store_short v48, v15, s[48:51], 0 offen")
        a("s_mov_b64 exec, s[74:75]")
        self.stamp(7)
        a("s_cmp_lg_u32 s6, 0")
        a("s_cbranch_scc1 L_fin")
        a(f"s_add_u32 s69, {S_EPOCH}, 1")
        a("v_mov_b32 v16, s69")
        a("v_mov_b32 v17, 0")
        a("v_cmp_eq_u32 vcc, 0, v0")
        a("s_and_saveexec_b64 s[74:75], vcc")
        a(f"buffer_store_dword v16, v17, {SRD_WS}, 0 offen")
        a("s_mov_b64 exec, s[74:75]")
        a("s_branch L_fin")

    def epilogue(self):
        a = self.a
        a.label("L_fin")
        if self.prof:
            a("s_waitcnt lgkmcnt(0)")
            a("s_memrealtime s[96:97]")
            a("s_lshl_b32 s7, s2, 3")
            a("s_add_u32 s7, s7, s5")
            a("s_lshl_b32 s7, s7, 6")
            a(f"s_add_u32 s7, s7, {hex(PROF)}")
            a("s_waitcnt lgkmcnt(0)")
            a("v_mov_b32 v11, s7")
            for k0 in (0, 4):
                for k in range(4):
                    a(f"v_mov_b32 v{12+k}, s{80+2*(k0+k)}")
                a("s_mov_b64 exec, 1")
                a(f"buffer_store_dwordx4 v[12:15], v11, {SRD_WS}, 0 offen offset:{k0*4}")
                a("s_mov_b64 exec, -1")
                a("s_nop 1")
            a("v_mov_b32 v12, s96")
            a("s_mov_b64 exec, 1")
            a(f"buffer_store_dword v12, v11, {SRD_WS}, 0 offen offset:32")
        a.label("L_end")
        a("s_endpgm")

    def build(self):
        a = self.a
        if self.prof:
            pass
        self.prologue()
        self.role_Y()
        self.role_X()
        self.epilogue()
        body = a.finish()
        hdr = open("adaLN_cond__sliding_block_cached__glu_gated_bilinear__decode.s.ref").read().split("\n")
        head = []
        for line in hdr:
            if line.startswith("; @launch"):
                head.append(f"; @launch grid=(256,1,1) block=(512,1,1) lds={self.lds}")
            elif line.startswith(";"):
                head.append(line)
            else:
                break
        txt = "\n".join(head) + "\n"
        txt += '.amdgcn_target "amdgcn-amd-amdhsa--gfx950"\n.text\n'
        txt += f".globl {NAME}\n.p2align 8\n.type {NAME},@function\n{NAME}:\n"
        txt += body
        txt += f"""
.section .rodata,"a"
.p2align 6
.amdhsa_kernel {NAME}
  .amdhsa_next_free_vgpr 120
  .amdhsa_next_free_sgpr 100
  .amdhsa_accum_offset 120
  .amdhsa_group_segment_fixed_size 0
  .amdhsa_kernarg_size 112
  .amdhsa_user_sgpr_count 2
  .amdhsa_user_sgpr_kernarg_segment_ptr 1
  .amdhsa_system_sgpr_workgroup_id_x 1
  .amdhsa_float_denorm_mode_32 3
.end_amdhsa_kernel
"""
        return txt


if __name__ == "__main__":
    import argparse
    ap = argparse.ArgumentParser()
    ap.add_argument("-o", default="adaLN_cond__sliding_block_cached__glu_gated_bilinear__decode.s")
    ap.add_argument("--prof", action="store_true")
    ap.add_argument("--lds", type=int, default=LDS_BYTES)
    ap.add_argument("--wf", default="nt")
    ap.add_argument("--local_st", default=None)
    ap.add_argument("--sleep", type=int, default=0)
    ap.add_argument("--ipf", type=int, default=0)
    args = ap.parse_args()
    g = Gen(prof=args.prof, lds=args.lds, wflags=args.wf, local_st=args.local_st, sleep=args.sleep, ipf=args.ipf)
    txt = g.build()
    open(args.o, "w").write(txt)
    print("written", args.o, "lines", txt.count("\n"), "nops", g.a.nops)
```

```python
import sys, os
sys.path.insert(0, os.path.dirname(os.path.abspath(__file__)))
from asmlib import Asm

NAME = "adaLN_cond__sliding_block_cached__glu_gated_bilinear__decode_kernel"

WS_SIZE = 0x200000
E1 = 0x10000
E2 = 0x20000
E3ML = 0x30000
E3O = 0x40000
E4 = 0x80000
M2B = 0x90000
F1B = 0xA0000
F2B = 0xC0000
PROF = 0x100000

L_RED = 0
L_QS = 16384
L_MLM = 17408
L_MLL = 17536
L_X1 = 18432
L_ZP = 20480
LDS_BYTES = 21504

LOG2E = 0x3FB8AA3B
SCALE = 0x3DB504F3
EPS = 0x3727C5AC

S_G, S_J, S_W = "s3", "s4", "s5"
P_X, P_K, P_V, P_WQ, P_WO, P_GATE, P_UP, P_DOWN, P_C, P_WMOD, P_OUT, P_DBG, P_WS = 16, 18, 20, 22, 24, 28, 30, 32, 34, 36, 38, 40, 42
SRD_WS = "s[44:47]"
S_T = "s60"
S_TB = ["s61", "s62", "s63", "s64"]
S_SELX, S_SELY, S_EPOCH = "s65", "s66", "s67"
S_CNT = "s68"


class Gen:
    def __init__(self, prof=False, st_flags="sc1", ld_flags="sc1", wflags="nt", lds=LDS_BYTES, timeout=1 << 15, local_st=None, sleep=0, ipf=0):
        self.a = Asm()
        self.prof = prof
        self.st = st_flags
        self.ld = ld_flags
        self.wf = wflags
        self.lds = lds
        self.timeout = timeout
        self.uid = 0
        self.nstamp = 0
        self.local_st = st_flags if local_st is None else local_st
        self.sleep = sleep
        self.ipf = ipf

    def lbl(self, base):
        self.uid += 1
        return f"L_{base}_{self.uid}"

    def stamp(self, idx):
        if self.prof:
            r = 80 + 2 * idx
            self.a(f"s_memrealtime s[{r}:{r+1}]")

    def srd(self, base, ptr, size):
        a = self.a
        a(f"s_mov_b32 s{base}, s{ptr}")
        a(f"s_mov_b32 s{base+1}, s{ptr+1}")
        a(f"s_mov_b32 s{base+2}, {hex(size)}")
        a(f"s_mov_b32 s{base+3}, 0x20000")

    def rb(self, dst, src, tmp=None):
        a = self.a
        t = tmp or dst
        a(f"v_cvt_pk_bf16_f32 {t}, {src}, {src}")
        a(f"v_and_b32 {dst}, 0xffff0000, {t}")

    def swap32(self, x, y):
        self.a(f"v_permlane32_swap_b32 {x}, {y}")

    def swap16(self, x, y):
        self.a(f"v_permlane16_swap_b32 {x}, {y}")

    def tr4(self, c):
        a = self.a
        self.swap32(c[0], c[2])
        self.swap32(c[1], c[3])
        a(f"v_add_f32 {c[0]}, {c[0]}, {c[2]}")
        a(f"v_add_f32 {c[1]}, {c[1]}, {c[3]}")
        self.swap16(c[0], c[1])
        a(f"v_add_f32 {c[0]}, {c[0]}, {c[1]}")

    def dpp(self, op, d, s0, s1, ctl):
        self.a(f"{op}_dpp {d}, {s0}, {s1} {ctl} row_mask:0xf bank_mask:0xf")

    def ror_red(self, op, v, amts):
        for k in amts:
            self.dpp(op, v, v, v, f"row_ror:{k}")

    def xrow_red(self, op, v, tmp):
        a = self.a
        a(f"v_mov_b32 {tmp}, {v}")
        self.swap16(v, tmp)
        a(f"{op} {v}, {v}, {tmp}")
        a(f"v_mov_b32 {tmp}, {v}")
        self.swap32(v, tmp)
        a(f"{op} {v}, {v}, {tmp}")

    def allred(self, op, v, tmp):
        self.ror_red(op, v, (8, 4, 2, 1))
        self.xrow_red(op, v, tmp)

    def check(self, quads, t0, t1, first=True):
        a = self.a
        for b in quads:
            a(f"v_perm_b32 {t0}, v{b+1}, v{b}, {S_SELX}")
            a(f"v_perm_b32 {t1}, v{b+3}, v{b+2}, {S_SELY}")
            a(f"v_or_b32 {t0}, {t0}, {t1}")
            if first:
                a(f"v_cmp_ne_u32 s[70:71], {S_T}, {t0}")
                first = False
            else:
                a(f"v_cmp_ne_u32 vcc, {S_T}, {t0}")
                a("s_or_b64 s[70:71], s[70:71], vcc")

    def strip(self, quads):
        for b in quads:
            for k in range(4):
                self.a(f"v_and_b32 v{b+k}, 0xffffff00, v{b+k}")

    def tagit(self, dstb, srcs):
        for k in range(4):
            self.a(f"v_and_or_b32 v{dstb+k}, {srcs[k]}, v3, {S_TB[k]}")

    def poll(self, name, loads, quads, t0, t1):
        a = self.a
        top = self.lbl(name)
        done = self.lbl(name + "_ok")
        a(f"s_mov_b32 {S_CNT}, 0")
        a.label(top)
        for ld in loads:
            a(ld)
        a("s_waitcnt vmcnt(0)")
        self.check(quads, t0, t1)
        a("s_cmp_eq_u64 s[70:71], 0")
        a(f"s_cbranch_scc1 {done}")
        if self.sleep:
            a(f"s_sleep {self.sleep}")
        a(f"s_add_u32 {S_CNT}, {S_CNT}, 1")
        a(f"s_cmp_lt_u32 {S_CNT}, {self.timeout}")
        a(f"s_cbranch_scc1 {top}")
        a("s_branch L_end")
        a.label(done)
        self.strip(quads)

    def gld(self, dst, vaddr, soff="0", off=0):
        o = f" offset:{off}" if off else ""
        return f"buffer_load_dwordx4 v[{dst}:{dst+3}], {vaddr}, {SRD_WS}, {soff} offen{o} {self.ld}"

    def gst(self, src, vaddr, flags=None):
        fl = self.st if flags is None else flags
        self.a(f"buffer_store_dwordx4 v[{src}:{src+3}], {vaddr}, {SRD_WS}, 0 offen {fl}")

    def wld(self, dst, vaddr, srd, soff_imm, sreg="s72"):
        a = self.a
        if soff_imm < 4096:
            o = f" offset:{soff_imm}" if soff_imm else ""
            a(f"buffer_load_dwordx4 v[{dst}:{dst+3}], {vaddr}, {srd}, 0 offen{o} {self.wf}")
        else:
            a(f"s_mov_b32 {sreg}, {hex(soff_imm)}")
            a(f"buffer_load_dwordx4 v[{dst}:{dst+3}], {vaddr}, {srd}, {sreg} offen {self.wf}")

    def delta_mfma(self, acc, hv, t, bregs, aw, first):
        a = self.a
        for r in range(4):
            self.dpp("v_and_b32", f"v{aw+r}", hv, f"v{4+r}", f"row_newbcast:{t}")
        c = "0" if first else f"v[{acc}:{acc+3}]"
        a(f"v_mfma_f32_16x16x32_bf16 v[{acc}:{acc+3}], v[{aw}:{aw+3}], v[{bregs}:{bregs+3}], {c}")

    def exec_lo32(self):
        self.a("s_mov_b32 exec_hi, 0")

    def exec_all(self):
        self.a("s_mov_b64 exec, -1")

    def silu_pack(self, v, t0, t1):
        a = self.a
        a(f"v_lshlrev_b32 {v}, 16, {v}")
        a(f"v_mul_f32 {t0}, 0xbfb8aa3b, {v}")
        a(f"v_exp_f32 {t0}, {t0}")
        a(f"v_add_f32 {t0}, 1.0, {t0}")
        a(f"v_rcp_f32 {t1}, {t0}")
        a(f"v_mul_f32 {t0}, {v}, {t1}")
        a(f"v_cvt_pk_bf16_f32 {v}, {t0}, {t0}")

    def div(self, q, num, den, r, e):
        a = self.a
        a(f"v_rcp_f32 {r}, {den}")
        a(f"v_mul_f32 {q}, {num}, {r}")
        a(f"v_fma_f32 {e}, -{q}, {den}, {num}")
        a(f"v_fma_f32 {q}, {e}, {r}, {q}")

    def ln_stats(self, x8, mean_bf, den, t0, t1, t2):
        a = self.a
        a(f"v_add_f32 {t0}, {x8[0]}, {x8[1]}")
        a(f"v_add_f32 {t1}, {x8[2]}, {x8[3]}")
        a(f"v_add_f32 {t2}, {x8[4]}, {x8[5]}")
        a(f"v_add_f32 {t0}, {t0}, {t1}")
        a(f"v_add_f32 {t1}, {x8[6]}, {x8[7]}")
        a(f"v_add_f32 {t0}, {t0}, {t2}")
        a(f"v_add_f32 {t0}, {t0}, {t1}")
        self.allred("v_add_f32", t0, t1)
        a(f"v_mul_f32 {t0}, 0x3b000000, {t0}")
        for k in range(8):
            a(f"v_sub_f32 {x8[k]}, {x8[k]}, {t0}")
        a(f"v_mul_f32 {t1}, {x8[0]}, {x8[0]}")
        a(f"v_mul_f32 {t2}, {x8[1]}, {x8[1]}")
        for k in range(2, 8, 2):
            a(f"v_fmac_f32 {t1}, {x8[k]}, {x8[k]}")
            a(f"v_fmac_f32 {t2}, {x8[k+1]}, {x8[k+1]}")
        a(f"v_add_f32 {t1}, {t1}, {t2}")
        self.rb(mean_bf, t0)
        self.allred("v_add_f32", t1, t2)
        a(f"v_mul_f32 {t1}, 0x3b000000, {t1}")
        self.rb(t1, t1)
        a(f"v_add_f32 {t1}, {hex(EPS)}, {t1}")
        self.rb(t1, t1)
        a(f"v_sqrt_f32 {t1}, {t1}")
        self.rb(den, t1)

    def ln_apply(self, out, x, mean_bf, den, t0, t1, t2):
        a = self.a
        a(f"v_sub_f32 {t0}, {x}, {mean_bf}")
        self.rb(t0, t0)
        self.div(out, t0, den, t1, t2)
        self.rb(out, out)

    def modulate_pack(self, out, ln, sc, sh, t0):
        a = self.a
        a(f"v_add_f32 {t0}, 1.0, {sc}")
        self.rb(t0, t0)
        a(f"v_mul_f32 {t0}, {ln}, {t0}")
        self.rb(t0, t0)
        a(f"v_add_f32 {t0}, {t0}, {sh}")
        a(f"v_cvt_pk_bf16_f32 {out}, {t0}, {t0}")

    def red_write(self, acc, vaddr, off=0):
        a = self.a
        self.exec_lo32()
        o = f" offset:{off}" if off else ""
        a(f"ds_write_b128 {vaddr}, v[{acc}:{acc+3}]{o}")
        self.exec_all()

    def red_sum8(self, base, vaddr, stride):
        a = self.a
        for k in range(8):
            a(f"ds_read_b128 v[{base+4*k}:{base+4*k+3}], {vaddr} offset:{k*stride}")
        for k in range(1, 8):
            a(f"s_waitcnt lgkmcnt({7-k})")
            for r in range(4):
                a(f"v_add_f32 v{base+r}, v{base+r}, v{base+4*k+r}")

    def prologue(self):
        a = self.a
        a("s_cmp_ge_u32 s2, 256")
        a("s_cbranch_scc1 L_end")
        if self.prof:
            for k in range(80, 98):
                a(f"s_mov_b32 s{k}, 0")
        self.stamp(0)
        a("s_load_dwordx16 s[16:31], s[0:1], 0")
        a("s_load_dwordx8 s[32:39], s[0:1], 64")
        a("s_load_dwordx4 s[40:43], s[0:1], 96")
        a("v_lshrrev_b32 v10, 6, v0")
        a("v_and_b32 v0, 63, v0")
        a("s_and_b32 s3, s2, 7")
        a("s_lshr_b32 s4, s2, 3")
        a("v_readfirstlane_b32 s5, v10")
        a("v_and_b32 v1, 15, v0")
        a("v_lshrrev_b32 v2, 4, v0")
        a("v_mov_b32 v3, 0xffffff00")
        a("v_and_b32 v10, 1, v1")
        a("v_lshlrev_b32 v10, 4, v10")
        a("v_mov_b32 v11, 0xffff")
        a("v_lshlrev_b32 v10, v10, v11")
        a("v_lshrrev_b32 v11, 1, v1")
        for r in range(4):
            a(f"v_cmp_eq_u32 vcc, {r}, v11")
            a(f"v_cndmask_b32 v{4+r}, 0, v10, vcc")
        a("v_and_b32 v11, 1, v11")
        a("v_cmp_eq_u32 vcc, 0, v11")
        a("v_cndmask_b32 v8, 0, v10, vcc")
        a("v_cndmask_b32 v9, v10, 0, vcc")
        a(f"s_mov_b32 {S_SELX}, 0x0c0c0400")
        a(f"s_mov_b32 {S_SELY}, 0x04000c0c")
        a("s_waitcnt lgkmcnt(0)")
        self.srd(44, P_WS, WS_SIZE)
        a(f"s_load_dword {S_EPOCH}, s[{P_WS}:{P_WS+1}], 0")
        a("s_cmp_lt_u32 s4, 16")
        a("s_cbranch_scc1 L_X")

    def make_tag(self):
        a = self.a
        a("s_waitcnt lgkmcnt(0)")
        a(f"s_add_u32 s69, {S_EPOCH}, 1")
        a(f"s_mul_i32 {S_T}, s69, 0x9E3779B1")
        a(f"s_xor_b32 {S_T}, {S_T}, 0x5BD1E995")
        a(f"s_and_b32 {S_TB[0]}, {S_T}, 0xff")
        a(f"s_bfe_u32 {S_TB[1]}, {S_T}, 0x80008")
        a(f"s_bfe_u32 {S_TB[2]}, {S_T}, 0x80010")
        a(f"s_lshr_b32 {S_TB[3]}, {S_T}, 24")

    def role_Y(self):
        a = self.a
        wf = self.wf
        a.label("L_Y")
        a("s_sub_u32 s6, s4, 16")
        self.srd(48, P_WMOD, 3145728)
        self.srd(52, P_WQ, 4194304)
        self.srd(56, P_X, 1024)
        a("v_lshlrev_b32 v10, 4, v1")
        LnoM = self.lbl("noM")
        a("s_cmp_lg_u32 s5, 0")
        a(f"s_cbranch_scc1 {LnoM}")
        self.srd(72 + 4, P_C, 1024)
        a("v_and_b32 v11, 7, v1")
        a("v_lshlrev_b32 v11, 2, v11")
        a("v_add_u32 v11, v11, v2")
        a("s_lshl_b32 s7, s6, 5")
        a("v_add_u32 v11, s7, v11")
        a("v_lshlrev_b32 v11, 1, v11")
        a("buffer_load_ushort v20, v11, s[76:79], 0 offen")
        a("v_mul_u32_u24 v11, 6144, v2")
        a("v_add_u32 v11, v11, v10")
        a("s_mul_i32 s7, s6, 196608")
        a("s_lshl_b32 s8, s3, 8")
        a("s_add_u32 s7, s7, s8")
        a("v_add_u32 v11, s7, v11")
        for t in range(8):
            self.wld(64 + 4 * t, "v11", "s[48:51]", t * 24576)
        a.label(LnoM)
        a("v_lshlrev_b32 v12, 4, v0")
        a("buffer_load_dwordx4 v[48:51], v12, s[56:59], 0 offen")
        a("s_lshr_b32 s8, s6, 2")
        a("s_and_b32 s9, s6, 3")
        a("s_lshl_b32 s10, s8, 7")
        a("s_lshl_b32 s11, s5, 4")
        a("s_add_u32 s10, s10, s11")
        a("v_and_b32 v12, 3, v1")
        a("v_lshlrev_b32 v12, 2, v12")
        a("v_add_u32 v12, v12, v2")
        a("v_add_u32 v12, s10, v12")
        a("v_lshlrev_b32 v12, 1, v12")
        a("buffer_load_ushort v21, v12, s[56:59], 0 offen")
        a("v_lshlrev_b32 v12, 13, v2")
        a("v_add_u32 v12, v12, v10")
        a("s_lshl_b32 s11, s10, 13")
        a("s_lshl_b32 s12, s3, 10")
        a("s_lshl_b32 s13, s9, 8")
        a("s_add_u32 s11, s11, s12")
        a("s_add_u32 s11, s11, s13")
        a("v_add_u32 v12, s11, v12")
        for t in range(4):
            self.wld(32 + 4 * t, "v12", "s[52:55]", t * 32768)
        self.make_tag()
        LnoM2 = self.lbl("noM2")
        a("s_cmp_lg_u32 s5, 0")
        a(f"s_cbranch_scc1 {LnoM2}")
        a("s_waitcnt vmcnt(14)")
        self.silu_pack("v20", "v22", "v23")
        a("s_waitcnt vmcnt(6)")
        for t in range(8):
            self.delta_mfma(60, "v20", t, 64 + 4 * t, 24 + 4 * (t & 1), t == 0)
        a("v_lshlrev_b32 v11, 1, v1")
        a("v_add_u32 v11, v11, v2")
        a("v_lshlrev_b32 v11, 4, v11")
        a("s_lshl_b32 s7, s3, 4")
        a("s_add_u32 s7, s7, s6")
        a("s_lshl_b32 s7, s7, 9")
        a(f"s_add_u32 s7, s7, {hex(E1)}")
        a("v_add_u32 v11, s7, v11")
        self.tagit(16, ["v60", "v61", "v62", "v63"])
        self.exec_lo32()
        self.gst(16, "v11")
        self.exec_all()
        self.stamp(1)
        a.label(LnoM2)
        a("s_waitcnt vmcnt(4)")
        a("s_waitcnt vmcnt(4)")
        xs = [f"v{52+k}" for k in range(8)]
        for k in range(4):
            a(f"v_lshlrev_b32 v{52+2*k}, 16, v{48+k}")
            a(f"v_and_b32 v{53+2*k}, 0xffff0000, v{48+k}")
        self.ln_stats(xs, "v22", "v23", "v24", "v25", "v26")
        a("v_lshlrev_b32 v21, 16, v21")
        self.ln_apply("v21", "v21", "v22", "v23", "v24", "v25", "v26")
        a("v_lshrrev_b32 v11, 2, v0")
        a("v_lshlrev_b32 v11, 9, v11")
        a("v_and_b32 v12, 3, v0")
        a("v_lshlrev_b32 v12, 4, v12")
        a("v_add_u32 v11, v11, v12")
        a("s_lshl_b32 s7, s8, 13")
        a("s_lshl_b32 s12, s5, 6")
        a("s_add_u32 s7, s7, s12")
        a(f"s_add_u32 s7, s7, {hex(E1)}")
        a("v_add_u32 v11, s7, v11")
        a("s_mov_b32 s73, 0x8000")
        self.poll("e1", [self.gld(52, "v11"), self.gld(56, "v11", "s73")], [52, 56], "v24", "v25")
        self.stamp(2)
        for b in (52, 56):
            self.tr4([f"v{b+k}" for k in range(4)])
            self.ror_red("v_add_f32", f"v{b}", (8, 4))
        self.rb("v52", "v52")
        self.rb("v56", "v56")
        self.modulate_pack("v20", "v21", "v56", "v52", "v24")
        for t in range(4):
            self.delta_mfma(60, "v20", t, 32 + 4 * t, 24 + 4 * (t & 1), t == 0)
        a("v_lshlrev_b32 v11, 1, v1")
        a("v_add_u32 v11, v11, v2")
        a("v_lshlrev_b32 v11, 4, v11")
        a("s_lshl_b32 s7, s5, 9")
        a("v_add_u32 v13, s7, v11")
        self.red_write(60, "v13")
        a("s_waitcnt lgkmcnt(0)")
        a("s_barrier")
        Lq = self.lbl("qpub")
        a("s_cmp_lg_u32 s5, 0")
        a(f"s_cbranch_scc1 {Lq}")
        a("v_lshlrev_b32 v11, 4, v0")
        self.red_sum8(32, "v11", 512)
        a("s_lshl_b32 s7, s3, 2")
        a("s_add_u32 s7, s7, s9")
        a("s_lshl_b32 s7, s7, 2")
        a("s_add_u32 s7, s7, s8")
        a("s_lshl_b32 s7, s7, 9")
        a(f"s_add_u32 s7, s7, {hex(E2)}")
        a("v_add_u32 v11, s7, v11")
        self.tagit(16, ["v32", "v33", "v34", "v35"])
        self.exec_lo32()
        self.gst(16, "v11", self.local_st)
        self.exec_all()
        a.label(Lq)
        self.stamp(3)
        a("s_cmp_ge_u32 s6, 8")
        a("s_cbranch_scc1 L_M2")
        self.role_O()
        self.role_M2()

    def role_O(self):
        a = self.a
        a.label("L_O")
        a("s_and_b32 s8, s6, 3")
        a("s_lshr_b32 s9, s6, 2")
        self.srd(48, P_WO, 4194304)
        a("v_lshlrev_b32 v12, 10, v2")
        a("v_add_u32 v12, v12, v10")
        a("s_lshl_b32 s10, s3, 9")
        a("s_lshl_b32 s11, s9, 8")
        a("s_add_u32 s10, s10, s11")
        a("s_lshl_b32 s11, s5, 5")
        a("s_add_u32 s10, s10, s11")
        a("s_lshl_b32 s10, s10, 10")
        a("s_lshl_b32 s11, s8, 8")
        a("s_add_u32 s10, s10, s11")
        a("v_add_u32 v12, s10, v12")
        for t in range(8):
            self.wld(64 + 4 * t, "v12", "s[48:51]", t * 4096)
        a("s_lshl_b32 s10, s9, 1")
        a("s_lshr_b32 s11, s5, 2")
        a("s_add_u32 s10, s10, s11")
        a("s_lshl_b32 s11, s3, 2")
        a("s_add_u32 s10, s10, s11")
        a("v_lshrrev_b32 v11, 2, v0")
        a("v_lshlrev_b32 v13, 9, v11")
        a("v_and_b32 v14, 3, v0")
        a("v_lshlrev_b32 v14, 4, v14")
        a("v_add_u32 v13, v13, v14")
        a("s_lshl_b32 s11, s10, 13")
        a("s_and_b32 s12, s5, 3")
        a("s_lshl_b32 s12, s12, 7")
        a("s_add_u32 s11, s11, s12")
        a(f"s_add_u32 s11, s11, {hex(E3O)}")
        a("v_add_u32 v13, s11, v13")
        a("v_lshlrev_b32 v14, 4, v11")
        a("s_lshl_b32 s11, s10, 8")
        a(f"s_add_u32 s11, s11, {hex(E3ML)}")
        a("v_add_u32 v14, s11, v14")
        self.poll("e3", [self.gld(32, "v13"), self.gld(36, "v13", off=64), self.gld(40, "v14")], [32, 36, 40], "v24", "v25")
        self.stamp(4)
        a("v_mov_b32 v22, v40")
        self.ror_red("v_max_f32", "v22", (8, 4))
        self.xrow_red("v_max_f32", "v22", "v23")
        a("v_sub_f32 v22, v40, v22")
        a(f"v_mul_f32 v22, {hex(LOG2E)}, v22")
        a("v_exp_f32 v22, v22")
        a("v_mul_f32 v23, v22, v41")
        for k in range(8):
            a(f"v_mul_f32 v{32+k}, v{32+k}, v22")
        self.ror_red("v_add_f32", "v23", (8, 4))
        self.xrow_red("v_add_f32", "v23", "v24")
        for b in (32, 36):
            self.tr4([f"v{b+k}" for k in range(4)])
            self.ror_red("v_add_f32", f"v{b}", (8, 4))
        for b, o in ((32, "v20"), (36, "v21")):
            self.div("v26", f"v{b}", "v23", "v24", "v25")
            a(f"v_cvt_pk_bf16_f32 {o}, v26, v26")
        for t in range(8):
            self.delta_mfma(60, "v20" if t < 4 else "v21", t & 3, 64 + 4 * t, 24 + 4 * (t & 1), t == 0)
        a("v_lshlrev_b32 v11, 1, v1")
        a("v_add_u32 v11, v11, v2")
        a("v_lshlrev_b32 v11, 4, v11")
        a("s_lshl_b32 s7, s5, 9")
        a("v_add_u32 v13, s7, v11")
        self.red_write(60, "v13")
        a("s_waitcnt lgkmcnt(0)")
        a("s_barrier")
        a("s_cmp_lg_u32 s5, 0")
        a("s_cbranch_scc1 L_fin")
        a("v_lshlrev_b32 v11, 4, v0")
        self.red_sum8(32, "v11", 512)
        a("s_lshl_b32 s7, s3, 1")
        a("s_add_u32 s7, s7, s9")
        a("s_lshl_b32 s7, s7, 11")
        a("s_lshl_b32 s10, s8, 9")
        a("s_add_u32 s7, s7, s10")
        a(f"s_add_u32 s7, s7, {hex(E4)}")
        a("v_add_u32 v11, s7, v11")
        self.tagit(16, ["v32", "v33", "v34", "v35"])
        self.exec_lo32()
        self.gst(16, "v11")
        self.exec_all()
        self.stamp(5)
        a("s_branch L_fin")

    def role_M2(self):
        a = self.a
        a.label("L_M2")
        a("s_sub_u32 s7, s6, 8")
        a("s_and_b32 s8, s7, 3")
        a("s_lshr_b32 s9, s7, 2")
        a("s_lshl_b32 s10, s3, 1")
        a("s_add_u32 s9, s9, s10")
        self.srd(76, P_C, 1024)
        a("s_lshl_b32 s10, s8, 7")
        a("s_lshl_b32 s11, s5, 4")
        a("s_add_u32 s10, s10, s11")
        a("v_and_b32 v12, 3, v1")
        a("v_lshlrev_b32 v12, 2, v12")
        a("v_add_u32 v12, v12, v2")
        a("v_add_u32 v12, s10, v12")
        a("v_lshlrev_b32 v12, 1, v12")
        a("buffer_load_ushort v20, v12, s[76:79], 0 offen")
        a("v_mul_u32_u24 v12, 6144, v2")
        a("v_add_u32 v12, v12, v10")
        a("s_mul_i32 s11, s10, 6144")
        a("s_lshl_b32 s12, s9, 8")
        a("s_add_u32 s11, s11, s12")
        a("s_add_u32 s11, s11, 2048")
        a("v_add_u32 v12, s11, v12")
        for t in range(4):
            self.wld(32 + 4 * t, "v12", "s[48:51]", t * 24576)
        a("s_waitcnt vmcnt(4)")
        self.silu_pack("v20", "v22", "v23")
        a("s_waitcnt vmcnt(0)")
        for t in range(4):
            self.delta_mfma(60, "v20", t, 32 + 4 * t, 24 + 4 * (t & 1), t == 0)
        a("v_lshlrev_b32 v11, 1, v1")
        a("v_add_u32 v11, v11, v2")
        a("v_lshlrev_b32 v11, 4, v11")
        a("s_lshl_b32 s7, s5, 9")
        a("v_add_u32 v13, s7, v11")
        self.red_write(60, "v13", off=4096)
        a("s_waitcnt lgkmcnt(0)")
        a("s_barrier")
        a("s_cmp_lg_u32 s5, 0")
        a("s_cbranch_scc1 L_fin")
        a("v_lshlrev_b32 v11, 4, v0")
        a("v_add_u32 v13, 4096, v11")
        self.red_sum8(32, "v13", 512)
        a("s_lshl_b32 s7, s9, 2")
        a("s_add_u32 s7, s7, s8")
        a("s_lshl_b32 s7, s7, 9")
        a(f"s_add_u32 s7, s7, {hex(M2B)}")
        a("v_add_u32 v11, s7, v11")
        self.tagit(16, ["v32", "v33", "v34", "v35"])
        self.exec_lo32()
        self.gst(16, "v11")
        self.exec_all()
        self.stamp(5)
        a("s_branch L_fin")

    def role_X(self):
        a = self.a
        a.label("L_X")
        a("s_mov_b32 s6, s4")
        self.srd(48, P_K, 67108864)
        self.srd(52, P_V, 67108864)
        a("s_lshl_b32 s7, s6, 8")
        a("s_lshl_b32 s8, s5, 5")
        a("s_add_u32 s7, s7, s8")
        a("s_add_u32 s7, s7, 28672")
        a("s_lshl_b32 s7, s7, 8")
        a("s_lshl_b32 s8, s3, 23")
        a("s_add_u32 s7, s7, s8")
        a("v_lshlrev_b32 v10, 8, v1")
        a("v_lshlrev_b32 v11, 4, v2")
        a("v_add_u32 v10, v10, v11")
        a("v_add_u32 v10, s7, v10")
        a("v_lshlrev_b32 v11, 10, v2")
        a("v_lshlrev_b32 v12, 4, v1")
        a("v_add_u32 v11, v11, v12")
        a("v_add_u32 v11, s7, v11")
        a("s_mov_b32 s73, 4096")
        wf = self.wf
        for u in range(2):
            for m in range(4):
                so = "0" if u == 0 else "s73"
                o = f" offset:{64*m}" if m else ""
                a(f"buffer_load_dwordx4 v[{32+16*u+4*m}:{35+16*u+4*m}], v10, s[48:51], {so} offen{o} {wf}")
        for u in range(2):
            for r in range(4):
                so = "0" if u == 0 else "s73"
                o = f" offset:{256*r}" if r else ""
                a(f"buffer_load_dwordx4 v[{64+16*u+4*r}:{67+16*u+4*r}], v11, s[52:55], {so} offen{o} {wf}")
        self.make_tag()
        a("s_lshr_b32 s8, s5, 1")
        a("s_and_b32 s9, s5, 1")
        a("s_lshl_b32 s10, s3, 2")
        a("s_add_u32 s10, s10, s8")
        a("s_lshl_b32 s10, s10, 11")
        a("s_lshl_b32 s11, s9, 8")
        a("s_add_u32 s10, s10, s11")
        a(f"s_add_u32 s10, s10, {hex(E2)}")
        a("v_lshlrev_b32 v12, 9, v2")
        a("v_lshlrev_b32 v13, 4, v1")
        a("v_add_u32 v12, v12, v13")
        a("v_add_u32 v12, s10, v12")
        self.poll("e2", [self.gld(96, "v12")], [96], "v24", "v25")
        self.stamp(2)
        self.tr4(["v96", "v97", "v98", "v99"])
        a("v_cvt_pk_bf16_f32 v96, v96, v96")
        a("s_lshl_b32 s10, s8, 8")
        a("s_lshl_b32 s11, s9, 7")
        a("s_add_u32 s10, s10, s11")
        a(f"s_add_u32 s10, s10, {L_QS}")
        a("v_lshlrev_b32 v12, 3, v1")
        a("v_lshlrev_b32 v13, 1, v2")
        a("v_add_u32 v12, v12, v13")
        a("v_add_u32 v12, s10, v12")
        a("ds_write_b16 v12, v96")
        a("s_waitcnt lgkmcnt(0)")
        a("s_barrier")
        a("v_lshrrev_b32 v12, 2, v1")
        a("v_lshlrev_b32 v12, 8, v12")
        a("v_lshlrev_b32 v13, 4, v2")
        a("v_add_u32 v12, v12, v13")
        for m in range(4):
            a(f"ds_read_b128 v[{104+4*m}:{107+4*m}], v12 offset:{L_QS + 64*m}")
        a("s_waitcnt lgkmcnt(0)")
        for u in range(2):
            for m in range(4):
                c = "0" if m == 0 else f"v[{96+4*u}:{99+4*u}]"
                a(f"v_mfma_f32_16x16x32_bf16 v[{96+4*u}:{99+4*u}], v[{32+16*u+4*m}:{35+16*u+4*m}], v[{104+4*m}:{107+4*m}], {c}")
        for f in range(9):
            a(f"v_mov_b32 v{30+4*f}, 0")
            a(f"v_mov_b32 v{31+4*f}, 0")
        S = [f"v{96+k}" for k in range(8)]
        for s in S:
            self.rb(s, s)
        for s in S:
            a(f"v_mul_f32 {s}, {hex(SCALE)}, {s}")
        for s in S:
            self.rb(s, s)
        a("v_max3_f32 v14, v96, v97, v98")
        a("v_max3_f32 v15, v99, v100, v101")
        a("v_max3_f32 v14, v14, v102, v103")
        a("v_max_f32 v14, v14, v15")
        self.xrow_red("v_max_f32", "v14", "v15")
        for s in S:
            a(f"v_sub_f32 {s}, {s}, v14")
        for s in S:
            a(f"v_mul_f32 {s}, {hex(LOG2E)}, {s}")
        for s in S:
            a(f"v_exp_f32 {s}, {s}")
        a("v_add_f32 v15, v96, v97")
        a("v_add_f32 v16, v98, v99")
        a("v_add_f32 v17, v100, v101")
        a("v_add_f32 v18, v102, v103")
        a("v_add_f32 v15, v15, v16")
        a("v_add_f32 v17, v17, v18")
        a("v_add_f32 v15, v15, v17")
        for f in range(8):
            a(f"v_cvt_pk_bf16_f32 v{96+f}, v{96+f}, v{96+f}")
        for f in range(8):
            a(f"v_and_b32 v{32+4*f}, v{96+f}, v8")
            a(f"v_and_b32 v{33+4*f}, v{96+f}, v9")
        for f in range(8):
            vb = 64 + 4 * f
            c0 = "0" if f == 0 else "v[104:107]"
            c1 = "0" if f == 0 else "v[108:111]"
            a(f"v_mfma_f32_16x16x32_bf16 v[104:107], v[{32+4*f}:{35+4*f}], v[{vb}:{vb+3}], {c0}")
            a(f"v_mfma_f32_16x16x32_bf16 v[108:111], v[{30+4*f}:{33+4*f}], v[{vb}:{vb+3}], {c1}")
        self.xrow_red("v_add_f32", "v15", "v16")
        a("v_lshrrev_b32 v12, 2, v1")
        a("v_lshlrev_b32 v12, 5, v12")
        a("s_lshl_b32 s10, s5, 2")
        a("v_add_u32 v12, s10, v12")
        a(f"ds_write_b32 v12, v14 offset:{L_MLM}")
        a(f"ds_write_b32 v12, v15 offset:{L_MLL}")
        a("v_lshlrev_b32 v12, 9, v2")
        a("v_lshlrev_b32 v13, 5, v1")
        a("v_add_u32 v12, v12, v13")
        a("s_lshl_b32 s10, s5, 11")
        a("v_add_u32 v12, s10, v12")
        a("ds_write_b128 v12, v[104:107]")
        a("ds_write_b128 v12, v[108:111] offset:16")
        a("s_waitcnt lgkmcnt(0)")
        a("s_barrier")
        Lr = self.lbl("ared")
        a("s_cmp_ge_u32 s5, 2")
        a(f"s_cbranch_scc1 {Lr}")
        a("s_lshl_b32 s10, s5, 6")
        a("v_add_u32 v12, s10, v0")
        a("v_lshrrev_b32 v13, 5, v12")
        a("v_lshlrev_b32 v14, 5, v13")
        a(f"ds_read_b128 v[16:19], v14 offset:{L_MLM}")
        a(f"ds_read_b128 v[20:23], v14 offset:{L_MLM+16}")
        a(f"ds_read_b128 v[24:27], v14 offset:{L_MLL}")
        a(f"ds_read_b128 v[28:31], v14 offset:{L_MLL+16}")
        a("v_lshlrev_b32 v14, 4, v12")
        for k in range(8):
            a(f"ds_read_b128 v[{32+4*k}:{35+4*k}], v14 offset:{k*2048}")
        a("s_waitcnt lgkmcnt(8)")
        a("v_max3_f32 v64, v16, v17, v18")
        a("v_max3_f32 v65, v19, v20, v21")
        a("v_max3_f32 v64, v64, v22, v23")
        a("v_max_f32 v64, v64, v65")
        for k in range(8):
            a(f"v_sub_f32 v{16+k}, v{16+k}, v64")
        for k in range(8):
            a(f"v_mul_f32 v{16+k}, {hex(LOG2E)}, v{16+k}")
        for k in range(8):
            a(f"v_exp_f32 v{16+k}, v{16+k}")
        a("v_mul_f32 v65, v16, v24")
        for k in range(1, 8):
            a(f"v_fmac_f32 v65, v{16+k}, v{24+k}")
        a("s_waitcnt lgkmcnt(0)")
        for r in range(4):
            a(f"v_mul_f32 v{68+r}, v16, v{32+r}")
        for k in range(1, 8):
            for r in range(4):
                a(f"v_fmac_f32 v{68+r}, v{16+k}, v{32+4*k+r}")
        a("s_lshl_b32 s10, s3, 2")
        a("v_add_u32 v13, s10, v13")
        a("v_lshlrev_b32 v13, 4, v13")
        a("v_add_u32 v13, s6, v13")
        a("v_lshlrev_b32 v14, 9, v13")
        a("v_and_b32 v15, 31, v12")
        a("v_lshlrev_b32 v66, 4, v15")
        a("v_add_u32 v14, v14, v66")
        a(f"v_add_u32 v14, {hex(E3O)}, v14")
        self.tagit(72, ["v68", "v69", "v70", "v71"])
        self.gst(72, "v14", self.local_st)
        a("v_lshlrev_b32 v13, 4, v13")
        a(f"v_add_u32 v13, {hex(E3ML)}, v13")
        a("v_mov_b32 v66, 0")
        self.tagit(76, ["v64", "v65", "v66", "v66"])
        a("v_cmp_eq_u32 vcc, 0, v15")
        a("s_and_saveexec_b64 s[74:75], vcc")
        self.gst(76, "v13", self.local_st)
        a("s_mov_b64 exec, s[74:75]")
        a.label(Lr)
        self.stamp(3)
        a("s_cmp_eq_u32 s3, 7")
        a("s_cbranch_scc1 L_Z")
        self.role_F()
        self.role_Z()

    def role_F(self):
        a = self.a
        a.label("L_F")
        a("s_lshr_b32 s8, s6, 3")
        a("s_lshl_b32 s9, s3, 1")
        a("s_add_u32 s8, s8, s9")
        a("s_and_b32 s9, s6, 7")
        self.srd(48, P_GATE, 1835008)
        self.srd(52, P_UP, 1835008)
        self.srd(56, P_DOWN, 1835008)
        self.srd(76, P_X, 1024)
        a("v_lshlrev_b32 v10, 4, v1")
        a("v_mul_u32_u24 v12, 3584, v2")
        a("v_add_u32 v12, v12, v10")
        a("s_lshl_b32 s10, s9, 6")
        a("s_lshl_b32 s11, s5, 3")
        a("s_add_u32 s10, s10, s11")
        a("s_mul_i32 s11, s10, 3584")
        a("s_lshl_b32 s12, s8, 8")
        a("s_add_u32 s11, s11, s12")
        a("v_add_u32 v12, s11, v12")
        for t in range(2):
            self.wld(32 + 4 * t, "v12", "s[48:51]", t * 14336)
        for t in range(2):
            self.wld(40 + 4 * t, "v12", "s[52:55]", t * 14336)
        Lnd = self.lbl("nodown")
        a("s_cmp_ge_u32 s5, 4")
        a(f"s_cbranch_scc1 {Lnd}")
        a("v_lshlrev_b32 v12, 10, v2")
        a("v_add_u32 v12, v12, v10")
        a("s_lshl_b32 s11, s8, 7")
        a("s_lshl_b32 s12, s9, 4")
        a("s_add_u32 s11, s11, s12")
        a("s_lshl_b32 s11, s11, 10")
        a("s_lshl_b32 s12, s5, 8")
        a("s_add_u32 s11, s11, s12")
        a("v_add_u32 v12, s11, v12")
        for t in range(4):
            self.wld(48 + 4 * t, "v12", "s[56:59]", t * 4096)
        a.label(Lnd)
        a("s_lshl_b32 s11, s5, 4")
        a("v_add_u32 v13, s11, v1")
        a("v_lshlrev_b32 v14, 2, v13")
        a("v_add_u32 v14, v14, v2")
        a("v_lshlrev_b32 v15, 1, v14")
        a("buffer_load_ushort v21, v15, s[76:79], 0 offen")
        a("v_lshrrev_b32 v15, 5, v13")
        a("v_lshlrev_b32 v15, 2, v15")
        a("v_add_u32 v15, v15, v2")
        a("v_lshlrev_b32 v15, 5, v15")
        a("v_and_b32 v16, 31, v13")
        a("v_add_u32 v15, v15, v16")
        a("v_lshlrev_b32 v15, 4, v15")
        a(f"v_add_u32 v15, {hex(M2B)}, v15")
        a("s_lshl_b32 s11, s9, 4")
        a("s_lshl_b32 s12, s5, 1")
        a("s_add_u32 s11, s11, s12")
        a("v_and_b32 v16, 1, v1")
        a("v_add_u32 v16, s11, v16")
        a("v_lshrrev_b32 v17, 1, v1")
        a("v_and_b32 v17, 1, v17")
        a("v_lshlrev_b32 v17, 2, v17")
        a("v_lshrrev_b32 v18, 5, v16")
        a("v_add3_u32 v17, v17, v18, 4")
        a("v_lshlrev_b32 v17, 2, v17")
        a("v_add_u32 v17, v17, v2")
        a("v_lshlrev_b32 v17, 5, v17")
        a("v_and_b32 v16, 31, v16")
        a("v_add_u32 v17, v17, v16")
        a("v_lshlrev_b32 v17, 4, v17")
        a(f"v_add_u32 v17, {hex(M2B)}, v17")
        self.poll("m2", [self.gld(64, "v15"), self.gld(68, "v17")], [64, 68], "v24", "v25")
        self.tr4(["v64", "v65", "v66", "v67"])
        self.rb("v64", "v64")
        self.tr4(["v68", "v69", "v70", "v71"])
        self.rb("v68", "v68")
        a("v_mov_b32_dpp v69, v68 quad_perm:[2,3,0,1] row_mask:0xf bank_mask:0xf")
        a("v_lshlrev_b32 v15, 11, v2")
        a("v_lshlrev_b32 v16, 4, v13")
        a("v_add_u32 v15, v15, v16")
        a(f"v_add_u32 v15, {hex(E4)}, v15")
        a("s_mov_b32 s73, 0x2000")
        a("s_mov_b32 s74, 0x4000")
        a("s_mov_b32 s75, 0x6000")
        self.poll("e4", [self.gld(72, "v15"), self.gld(76, "v15", "s73"), self.gld(80, "v15", "s74"), self.gld(84, "v15", "s75")],
                  [72, 76, 80, 84], "v24", "v25")
        self.stamp(4)
        for r in range(4):
            a(f"v_add_f32 v{72+r}, v{72+r}, v{76+r}")
            a(f"v_add_f32 v{80+r}, v{80+r}, v{84+r}")
        for r in range(4):
            a(f"v_add_f32 v{72+r}, v{72+r}, v{80+r}")
        self.tr4(["v72", "v73", "v74", "v75"])
        self.rb("v72", "v72")
        a("v_mul_f32 v72, v64, v72")
        self.rb("v72", "v72")
        a("v_lshlrev_b32 v21, 16, v21")
        a("v_add_f32 v72, v21, v72")
        self.rb("v72", "v72")
        a("v_lshlrev_b32 v15, 2, v14")
        a(f"ds_write_b32 v15, v72 offset:{L_X1}")
        a("s_waitcnt lgkmcnt(0)")
        a("s_barrier")
        a("v_lshlrev_b32 v15, 5, v0")
        a(f"ds_read_b128 v[72:75], v15 offset:{L_X1}")
        a(f"ds_read_b128 v[76:79], v15 offset:{L_X1+16}")
        a("v_and_b32 v16, 1, v1")
        a("v_lshlrev_b32 v16, 2, v16")
        a("v_add_u32 v16, v16, v2")
        a("v_add_u32 v16, s10, v16")
        a("v_lshlrev_b32 v16, 2, v16")
        a(f"ds_read_b32 v21, v16 offset:{L_X1}")
        a("s_waitcnt lgkmcnt(0)")
        self.ln_stats([f"v{72+k}" for k in range(8)], "v22", "v23", "v24", "v25", "v26")
        self.ln_apply("v21", "v21", "v22", "v23", "v24", "v25", "v26")
        self.modulate_pack("v20", "v21", "v69", "v68", "v24")
        for t in range(2):
            self.delta_mfma(88, "v20", t, 32 + 4 * t, 24, t == 0)
            c = "0" if t == 0 else "v[92:95]"
            a(f"v_mfma_f32_16x16x32_bf16 v[92:95], v[24:27], v[{40+4*t}:{43+4*t}], {c}")
            if t == 0:
                a("s_nop 1")
        a("v_lshlrev_b32 v11, 1, v1")
        a("v_add_u32 v11, v11, v2")
        a("v_lshlrev_b32 v11, 4, v11")
        a("s_lshl_b32 s7, s5, 10")
        a("v_add_u32 v13, s7, v11")
        self.exec_lo32()
        a("ds_write_b128 v13, v[88:91]")
        a("ds_write_b128 v13, v[92:95] offset:512")
        self.exec_all()
        a("s_waitcnt lgkmcnt(0)")
        a("s_barrier")
        Lp = self.lbl("f1pub")
        a("s_cmp_lg_u32 s5, 0")
        a(f"s_cbranch_scc1 {Lp}")
        a("v_lshlrev_b32 v11, 4, v0")
        self.red_sum8(64, "v11", 1024)
        a("s_lshl_b32 s7, s8, 3")
        a("s_add_u32 s7, s7, s9")
        a("s_lshl_b32 s7, s7, 10")
        a(f"s_add_u32 s7, s7, {hex(F1B)}")
        a("v_add_u32 v11, s7, v11")
        self.tagit(16, ["v64", "v65", "v66", "v67"])
        self.gst(16, "v11", self.local_st)
        a.label(Lp)
        self.stamp(5)
        a("s_cmp_ge_u32 s5, 4")
        a("s_cbranch_scc1 L_fin")
        a("v_lshrrev_b32 v11, 3, v0")
        a("v_lshlrev_b32 v11, 10, v11")
        a("v_lshrrev_b32 v12, 2, v0")
        a("v_and_b32 v12, 1, v12")
        a("v_lshlrev_b32 v12, 9, v12")
        a("v_add_u32 v11, v11, v12")
        a("v_and_b32 v12, 3, v0")
        a("v_lshlrev_b32 v12, 4, v12")
        a("v_add_u32 v11, v11, v12")
        a("s_lshl_b32 s7, s8, 13")
        a("s_lshl_b32 s10, s9, 6")
        a("s_add_u32 s7, s7, s10")
        a(f"s_add_u32 s7, s7, {hex(F1B)}")
        a("v_add_u32 v11, s7, v11")
        self.poll("e4b", [self.gld(64, "v11")], [64], "v24", "v25")
        self.stamp(6)
        self.tr4(["v64", "v65", "v66", "v67"])
        self.ror_red("v_add_f32", "v64", (8,))
        self.rb("v64", "v64")
        a("v_mov_b32_dpp v65, v64 row_ror:4 row_mask:0xf bank_mask:0xf")
        a("v_mul_f32 v64, v64, v65")
        a("v_cvt_pk_bf16_f32 v20, v64, v64")
        for t in range(4):
            self.delta_mfma(88, "v20", t, 48 + 4 * t, 24 + 4 * (t & 1), t == 0)
        a("v_lshlrev_b32 v11, 1, v1")
        a("v_add_u32 v11, v11, v2")
        a("v_lshlrev_b32 v11, 4, v11")
        a("s_lshl_b32 s7, s8, 3")
        a("s_add_u32 s7, s7, s9")
        a("s_lshl_b32 s7, s7, 11")
        a("s_lshl_b32 s10, s5, 9")
        a("s_add_u32 s7, s7, s10")
        a(f"s_add_u32 s7, s7, {hex(F2B)}")
        a("v_add_u32 v11, s7, v11")
        self.tagit(16, ["v88", "v89", "v90", "v91"])
        self.exec_lo32()
        self.gst(16, "v11")
        self.exec_all()
        self.stamp(7)
        a("s_branch L_fin")

    def role_Z(self):
        a = self.a
        a.label("L_Z")
        a("v_lshrrev_b32 v11, 3, v0")
        a("v_and_b32 v12, 7, v0")
        a("s_lshl_b32 s8, s6, 3")
        a("v_add_u32 v13, s8, v12")
        a("v_lshlrev_b32 v13, 4, v13")
        a("s_cmp_eq_u32 s5, 7")
        a("s_cbranch_scc1 L_Z7")
        a("v_lshlrev_b32 v14, 11, v11")
        a("v_add_u32 v14, v14, v13")
        a("s_lshl_b32 s9, s5, 15")
        a(f"s_add_u32 s9, s9, {hex(F2B)}")
        a("v_add_u32 v14, s9, v14")
        a("s_mov_b32 s73, 0x4000")
        self.poll("e5", [self.gld(32, "v14"), self.gld(36, "v14", "s73")], [32, 36], "v24", "v25")
        self.stamp(6)
        for r in range(4):
            a(f"v_add_f32 v{32+r}, v{32+r}, v{36+r}")
        self.tr4(["v32", "v33", "v34", "v35"])
        self.ror_red("v_add_f32", "v32", (8,))
        a("v_lshlrev_b32 v14, 4, v12")
        a("v_lshlrev_b32 v15, 2, v2")
        a("v_add_u32 v14, v14, v15")
        a("s_lshl_b32 s9, s5, 7")
        a("v_add_u32 v14, s9, v14")
        a(f"ds_write_b32 v14, v32 offset:{L_ZP}")
        a("s_waitcnt lgkmcnt(0)")
        a("s_barrier")
        a("s_branch L_fin")
        a.label("L_Z7")
        self.srd(76, P_X, 1024)
        self.srd(48, P_OUT, 1024)
        a("v_lshlrev_b32 v14, 2, v12")
        a("v_add_u32 v14, v14, v2")
        a("s_lshl_b32 s9, s6, 5")
        a("v_add_u32 v14, s9, v14")
        a("v_lshlrev_b32 v15, 1, v14")
        a("buffer_load_ushort v21, v15, s[76:79], 0 offen")
        a("v_add_u32 v16, s8, v12")
        a("v_lshrrev_b32 v17, 5, v16")
        a("v_and_b32 v18, 1, v11")
        a("v_mul_u32_u24 v18, 12, v18")
        a("v_add_u32 v17, v17, v18")
        a("v_lshlrev_b32 v17, 2, v17")
        a("v_add_u32 v17, v17, v2")
        a("v_lshlrev_b32 v17, 5, v17")
        a("v_and_b32 v16, 31, v16")
        a("v_add_u32 v17, v17, v16")
        a("v_lshlrev_b32 v17, 4, v17")
        a(f"v_add_u32 v17, {hex(M2B)}, v17")
        self.poll("zm2", [self.gld(40, "v17")], [40], "v24", "v25")
        self.tr4(["v40", "v41", "v42", "v43"])
        self.rb("v40", "v40")
        a("v_mov_b32_dpp v41, v40 row_ror:8 row_mask:0xf bank_mask:0xf")
        a("v_lshlrev_b32 v16, 11, v11")
        a("v_add_u32 v16, v16, v13")
        a(f"v_add_u32 v16, {hex(E4)}, v16")
        a("s_mov_b32 s73, 0x4000")
        self.poll("ze4", [self.gld(32, "v16"), self.gld(36, "v16", "s73")], [32, 36], "v24", "v25")
        for r in range(4):
            a(f"v_add_f32 v{32+r}, v{32+r}, v{36+r}")
        self.tr4(["v32", "v33", "v34", "v35"])
        self.ror_red("v_add_f32", "v32", (8,))
        self.rb("v32", "v32")
        a("v_mul_f32 v32, v40, v32")
        self.rb("v32", "v32")
        a("v_lshlrev_b32 v21, 16, v21")
        a("v_add_f32 v32, v21, v32")
        self.rb("v32", "v32")
        a("s_barrier")
        a("v_lshlrev_b32 v16, 4, v12")
        a("v_lshlrev_b32 v17, 2, v2")
        a("v_add_u32 v16, v16, v17")
        for k in range(7):
            a(f"ds_read_b32 v{48+k}, v16 offset:{L_ZP + 128*k}")
        a("s_waitcnt lgkmcnt(0)")
        a("v_add_f32 v48, v48, v49")
        a("v_add_f32 v50, v50, v51")
        a("v_add_f32 v52, v52, v53")
        a("v_add_f32 v48, v48, v50")
        a("v_add_f32 v52, v52, v54")
        a("v_add_f32 v48, v48, v52")
        self.rb("v48", "v48")
        a("v_mul_f32 v48, v41, v48")
        self.rb("v48", "v48")
        a("v_add_f32 v48, v32, v48")
        a("v_cvt_pk_bf16_f32 v48, v48, v48")
        a("v_and_b32 v18, 1, v11")
        a("v_cmp_eq_u32 vcc, 0, v18")
        a("s_and_saveexec_b64 s[74:75], vcc")
        a("buffer_store_short v48, v15, s[48:51], 0 offen")
        a("s_mov_b64 exec, s[74:75]")
        self.stamp(7)
        a("s_cmp_lg_u32 s6, 0")
        a("s_cbranch_scc1 L_fin")
        a(f"s_add_u32 s69, {S_EPOCH}, 1")
        a("v_mov_b32 v16, s69")
        a("v_mov_b32 v17, 0")
        a("v_cmp_eq_u32 vcc, 0, v0")
        a("s_and_saveexec_b64 s[74:75], vcc")
        a(f"buffer_store_dword v16, v17, {SRD_WS}, 0 offen")
        a("s_mov_b64 exec, s[74:75]")
        a("s_branch L_fin")

    def epilogue(self):
        a = self.a
        a.label("L_fin")
        if self.prof:
            a("s_waitcnt lgkmcnt(0)")
            a("s_memrealtime s[96:97]")
            a("s_lshl_b32 s7, s2, 3")
            a("s_add_u32 s7, s7, s5")
            a("s_lshl_b32 s7, s7, 6")
            a(f"s_add_u32 s7, s7, {hex(PROF)}")
            a("s_waitcnt lgkmcnt(0)")
            a("v_mov_b32 v11, s7")
            for k0 in (0, 4):
                for k in range(4):
                    a(f"v_mov_b32 v{12+k}, s{80+2*(k0+k)}")
                a("s_mov_b64 exec, 1")
                a(f"buffer_store_dwordx4 v[12:15], v11, {SRD_WS}, 0 offen offset:{k0*4}")
                a("s_mov_b64 exec, -1")
                a("s_nop 1")
            a("v_mov_b32 v12, s96")
            a("s_mov_b64 exec, 1")
            a(f"buffer_store_dword v12, v11, {SRD_WS}, 0 offen offset:32")
        if self.prof:
            Ld = self.lbl("dbg")
            a("s_mov_b64 exec, 1")
            a("s_mov_b32 s48, s40\ns_mov_b32 s49, s41\ns_mov_b32 s50, 256\ns_mov_b32 s51, 0x20000")
            for (wg, w, slot, ks) in ((7, 7, 0, (2, 3, 7, 8)), (0, 0, 4, (2, 3, 4, 5, 6, 7)), (128, 0, 10, (1, 2, 3, 4, 5, 0))):
                Ln = self.lbl("dn")
                a(f"s_cmp_lg_u32 s2, {wg}")
                a(f"s_cbranch_scc1 {Ln}")
                a(f"s_cmp_lg_u32 s5, {w}")
                a(f"s_cbranch_scc1 {Ln}")
                for i, k in enumerate(ks):
                    src = "s96" if k == 8 else f"s{80+2*k}"
                    if k == 0:
                        a(f"v_mov_b32 v12, s80")
                    else:
                        a(f"s_sub_u32 s7, {src}, s80")
                        a("v_mov_b32 v12, s7")
                    a(f"v_mov_b32 v13, {4*(slot+i)}")
                    a("buffer_store_dword v12, v13, s[48:51], 0 offen")
                a.label(Ln)
        a.label("L_end")
        a("s_endpgm")

    def build(self):
        a = self.a
        if self.prof:
            pass
        self.prologue()
        self.role_Y()
        self.role_X()
        self.epilogue()
        body = a.finish()
        hdr = open("adaLN_cond__sliding_block_cached__glu_gated_bilinear__decode.s.ref").read().split("\n")
        head = []
        for line in hdr:
            if line.startswith("; @launch"):
                head.append(f"; @launch grid=(256,1,1) block=(512,1,1) lds={self.lds}")
            elif line.startswith(";"):
                head.append(line)
            else:
                break
        txt = "\n".join(head) + "\n"
        txt += '.amdgcn_target "amdgcn-amd-amdhsa--gfx950"\n.text\n'
        txt += f".globl {NAME}\n.p2align 8\n.type {NAME},@function\n{NAME}:\n"
        txt += body
        txt += f"""
.section .rodata,"a"
.p2align 6
.amdhsa_kernel {NAME}
  .amdhsa_next_free_vgpr 120
  .amdhsa_next_free_sgpr 100
  .amdhsa_accum_offset 120
  .amdhsa_group_segment_fixed_size 0
  .amdhsa_kernarg_size 112
  .amdhsa_user_sgpr_count 2
  .amdhsa_user_sgpr_kernarg_segment_ptr 1
  .amdhsa_system_sgpr_workgroup_id_x 1
  .amdhsa_float_denorm_mode_32 3
.end_amdhsa_kernel
"""
        return txt


if __name__ == "__main__":
    import argparse
    ap = argparse.ArgumentParser()
    ap.add_argument("-o", default="adaLN_cond__sliding_block_cached__glu_gated_bilinear__decode.s")
    ap.add_argument("--prof", action="store_true")
    ap.add_argument("--lds", type=int, default=LDS_BYTES)
    ap.add_argument("--wf", default="nt")
    ap.add_argument("--local_st", default=None)
    ap.add_argument("--sleep", type=int, default=0)
    ap.add_argument("--ipf", type=int, default=0)
    args = ap.parse_args()
    g = Gen(prof=args.prof, lds=args.lds, wflags=args.wf, local_st=args.local_st, sleep=args.sleep, ipf=args.ipf)
    txt = g.build()
    open(args.o, "w").write(txt)
    print("written", args.o, "lines", txt.count("\n"), "nops", g.a.nops)
```
